```python
import torch

def _softmax(x, axis=-1):
    return torch.softmax(x, dim=axis)
def _gelu(x):
    return torch.nn.functional.gelu(x, approximate="tanh")
def _silu(x):
    return torch.nn.functional.silu(x)
def _sigmoid(x):
    return torch.sigmoid(x)
def _layernorm(x, axis=-1, eps=1e-5):
    m = x.mean(dim=axis, keepdim=True)
    v = x.var(dim=axis, keepdim=True, unbiased=False)
    return (x - m) / torch.sqrt(v + eps)
def _scatter_add(tgt, idx, src, axis=0):
    return tgt.clone().index_add_(axis, idx, src)
def _segment_sum(src, seg, n):
    out = torch.zeros((n,) + src.shape[1:], dtype=src.dtype)
    return out.index_add_(0, seg, src)
def _pad(x, pw):
    flat = tuple(v for pair in reversed(pw) for v in pair)
    return torch.nn.functional.pad(x, flat)

kernel_name = 'gated_mix__grouped_kv_mqa__sliding_local_dilated__prompt'

def setup_inputs():

    _w = (lambda a: (lambda t: t.to(torch.bfloat16) if t.is_floating_point() else t)(torch.as_tensor(a)))
    def _A_setup():
        B, S, D, H = 1, 2048, 448, 16
        Dh = D // H
        return {
            "x": _w((lambda *s: torch.randn(*s, dtype=torch.bfloat16) * 0.05)(B, S, D)),
            "wq": _w((lambda *s: torch.randn(*s, dtype=torch.bfloat16) * 1.6)(D, H * Dh)),
            "wk": _w((lambda *s: torch.randn(*s, dtype=torch.bfloat16) * 1.6)(D, Dh)),
            "wv": _w((lambda *s: torch.randn(*s, dtype=torch.bfloat16) * 0.2)(D, Dh)),
            "wo": _w((lambda *s: torch.randn(*s, dtype=torch.bfloat16) * 0.2)(H * Dh, D)),
        }
    _A_in = _A_setup()

    def _B_setup():
        B, S, D = 1, 2048, 448
        return {
            "x": _w((lambda *s: torch.randn(*s, dtype=torch.bfloat16) * 0.05)(B, S, D)),
            "wqkv": _w((lambda *s: torch.randn(*s, dtype=torch.bfloat16) * 0.8)(D, 3 * D)),
            "wo": _w((lambda *s: torch.randn(*s, dtype=torch.bfloat16) * 0.05)(D, D)),
        }
    _B_in = _B_setup()

    return {
        "A_x": _A_in["x"],
        "A_wq": _A_in["wq"],
        "A_wk": _A_in["wk"],
        "A_wv": _A_in["wv"],
        "A_wo": _A_in["wo"],
        "B_x": _B_in["x"],
        "B_wqkv": _B_in["wqkv"],
        "B_wo": _B_in["wo"],
        "gate_w": _w((lambda *s: torch.randn(*s, dtype=torch.bfloat16) * 0.05)(448) * 16.0),
    }

def reference(A_x, A_wq, A_wk, A_wv, A_wo, B_x, B_wqkv, B_wo, gate_w):
    def _A_ref(x, wq, wk, wv, wo):
        B, S, D = x.shape
        H = 16
        Dh = D // H
        q = (lambda x, *d: x.permute(*d))((x @ wq).reshape(B, S, H, Dh), 0, 2, 1, 3)
        k = x @ wk
        v = x @ wv
        scores = torch.einsum("bhqd,bkd->bhqk", q, k) * (Dh ** -0.5)
        p = _softmax(scores, axis=-1)
        o = torch.einsum("bhqk,bkd->bhqd", p, v)
        return (lambda x, *d: x.permute(*d))(o, 0, 2, 1, 3).reshape(B, S, H * Dh) @ wo

    def _B_ref(x, wqkv, wo):
        B, S, D = x.shape
        H = 16; Dh = D // H
        W, dil = 8, 2
        qkv = (lambda x, *d: x.permute(*d))((x @ wqkv).reshape(B, S, 3, H, Dh), 2, 0, 3, 1, 4)
        q, k, v = qkv[0], qkv[1], qkv[2]
        scale = Dh ** -0.5
        pos = torch.arange(S)
        off = torch.arange(W) * dil
        idx = pos[:, None] - off[None, :]
        mask = idx >= 0
        idx_c = torch.where(mask, idx, 0).reshape(-1)
        kg = k[:, :, idx_c, :].reshape(B, H, S, W, Dh)
        vg = v[:, :, idx_c, :].reshape(B, H, S, W, Dh)
        logits = torch.einsum("bhsd,bhswd->bhsw", q, kg) * scale
        logits = torch.where(mask[None, None, :, :], logits, -1e9)
        attn = _softmax(logits, axis=-1)
        o = torch.einsum("bhsw,bhswd->bhsd", attn, vg)
        return (lambda x, *d: x.permute(*d))(o, 0, 2, 1, 3).reshape(B, S, D) @ wo

    x = A_x
    g = _sigmoid((x * gate_w).sum(-1, keepdims=True))
    a = _A_ref(x, A_wq, A_wk, A_wv, A_wo)
    b = _B_ref(x, B_wqkv, B_wo)
    return g * a + (1 - g) * b
```

```python
import sys

NAME = "gated_mix__grouped_kv_mqa__sliding_local_dilated__prompt"
S = 2048
D = 448
WS_QA = 0x000000
WS_KA = 0x200000
WS_VT = 0x220000
WS_GATE = 0x240000
WS_QKVB = 0x300000
WS_OAB = 0x900000
SZ_QA = 16 * 2048 * 32 * 2
SZ_KA = 2048 * 32 * 2
SZ_GATE = 2048 * 4
SZ_QKVB = 2048 * 1344 * 2
SZ_OAB = 2048 * 896 * 2

out = []
def E(s=""):
    out.append(s)

_lbl = [0]
def L(prefix="L"):
    _lbl[0] += 1
    return f"{prefix}_{_lbl[0]}"

def srd(dst, base_lo, base_hi, nbytes, add=0):
    if add:
        E(f"    s_add_u32 s{dst}, s{base_lo}, {add}")
        E(f"    s_addc_u32 s{dst+1}, s{base_hi}, 0")
    else:
        E(f"    s_mov_b32 s{dst}, s{base_lo}")
        E(f"    s_mov_b32 s{dst+1}, s{base_hi}")
    E(f"    s_mov_b32 s{dst+2}, {nbytes}")
    E(f"    s_mov_b32 s{dst+3}, 0x00020000")

def kernel_desc(name, vgpr, sgpr=96):
    E(".section .rodata,\"a\"")
    E(".p2align 6")
    E(f".amdhsa_kernel {name}")
    E(f"  .amdhsa_next_free_vgpr {vgpr}")
    E(f"  .amdhsa_next_free_sgpr {sgpr}")
    E(f"  .amdhsa_accum_offset {((vgpr+3)//4)*4}")
    E("  .amdhsa_group_segment_fixed_size 0")
    E("  .amdhsa_kernarg_size 96")
    E("  .amdhsa_user_sgpr_count 2")
    E("  .amdhsa_user_sgpr_kernarg_segment_ptr 1")
    E("  .amdhsa_system_sgpr_workgroup_id_x 1")
    E(".end_amdhsa_kernel")

LROW = 192
LBUF = 64 * LROW

def gemm_body(nchunks, NW, MW, wload, xstride, acc0, xb0, ab0, wst0, v_xoff, v_ldsw, v_ldsr):
    def xload(c):
        b = xb0 + (c % 2) * MW * 16
        E(f"    s_mov_b32 s40, {c*128}")
        for mt in range(MW):
            for ks in range(4):
                r = b + (mt * 4 + ks) * 4
                E(f"    buffer_load_dwordx4 v[{r}:{r+3}], v{v_xoff}, s[8:11], s40 offen offset:{ks*32 + mt*32*xstride}")
        return MW * 4
    def wstore(buf):
        E(f"    ds_write_b128 v{v_ldsw}, v[{wst0}:{wst0+3}] offset:{buf*LBUF}")
        E(f"    ds_write_b128 v{v_ldsw}, v[{wst0+4}:{wst0+7}] offset:{buf*LBUF + 32*LROW}")
    for i in range(NW * MW * 16):
        E(f"    v_mov_b32 v{acc0+i}, 0")
    nw = wload(0)
    nx = xload(0)
    E(f"    s_waitcnt vmcnt({nx})")
    wstore(0)
    E("    s_waitcnt lgkmcnt(0)")
    E("    s_barrier")
    for c in range(nchunks):
        buf = c % 2
        last = (c == nchunks - 1)
        if not last:
            nw = wload(c + 1)
            nx = xload(c + 1)
            E(f"    s_waitcnt vmcnt({nw+nx})")
        else:
            E("    s_waitcnt vmcnt(0)")
        xb = xb0 + buf * MW * 16
        for ks in range(4):
            for nt in range(NW):
                a = ab0 + nt * 4
                o = buf * LBUF + ks * 16 * LROW + nt * 64
                E(f"    ds_read_b64_tr_b16 v[{a}:{a+1}], v{v_ldsr} offset:{o}")
                E(f"    ds_read_b64_tr_b16 v[{a+2}:{a+3}], v{v_ldsr} offset:{o + 4*LROW}")
            E("    s_waitcnt lgkmcnt(0)")
            for nt in range(NW):
                a = ab0 + nt * 4
                for mt in range(MW):
                    x = xb + (mt * 4 + ks) * 4
                    acc = acc0 + (nt * MW + mt) * 16
                    E(f"    v_mfma_f32_32x32x16_bf16 v[{acc}:{acc+15}], v[{a}:{a+3}], v[{x}:{x+3}], v[{acc}:{acc+15}]")
        if not last:
            E(f"    s_waitcnt vmcnt({nx})")
            wstore(1 - buf)
            E("    s_waitcnt lgkmcnt(0)")
            E("    s_barrier")
    E("    s_nop 15")
    E("    s_nop 3")

def gemm_lane_setup(v_lane, v_ldsw, v_ldsr, v_t):
    E(f"    v_and_b32 v{v_lane}, 63, v0")
    E(f"    v_lshrrev_b32 v{v_t}, 3, v0")
    E(f"    v_mul_u32_u24 v{v_ldsw}, {LROW}, v{v_t}")
    E(f"    v_and_b32 v{v_t}, 7, v0")
    E(f"    v_lshl_add_u32 v{v_ldsw}, v{v_t}, 4, v{v_ldsw}")
    E(f"    v_lshrrev_b32 v{v_t}, 5, v{v_lane}")
    E(f"    v_lshlrev_b32 v{v_ldsr}, 3, v{v_t}")
    E(f"    v_bfe_u32 v{v_t}, v{v_lane}, 2, 2")
    E(f"    v_add_u32 v{v_ldsr}, v{v_ldsr}, v{v_t}")
    E(f"    v_mul_u32_u24 v{v_ldsr}, {LROW}, v{v_ldsr}")
    E(f"    v_bfe_u32 v{v_t}, v{v_lane}, 4, 1")
    E(f"    v_lshl_add_u32 v{v_ldsr}, v{v_t}, 5, v{v_ldsr}")
    E(f"    v_and_b32 v{v_t}, 3, v{v_lane}")
    E(f"    v_lshl_add_u32 v{v_ldsr}, v{v_t}, 3, v{v_ldsr}")

def gen_k1():
    name = "k1_proj_kernel"
    E(".p2align 8")
    E(f".globl {name}")
    E(f".type {name},@function")
    E(f"{name}:")
    lend = L("k1end")
    E("    s_cmp_ge_u32 s2, 464")
    E(f"    s_cbranch_scc1 {lend}")
    E("    s_load_dwordx2 s[20:21], s[0:1], 0")
    E("    s_load_dwordx2 s[22:23], s[0:1], 8")
    E("    s_load_dwordx2 s[24:25], s[0:1], 16")
    E("    s_load_dwordx2 s[26:27], s[0:1], 24")
    E("    s_load_dwordx2 s[28:29], s[0:1], 48")
    E("    s_load_dwordx2 s[30:31], s[0:1], 64")
    E("    s_load_dwordx2 s[32:33], s[0:1], 88")
    E(f"    s_mov_b32 s3, {(1<<32)//29 + 1}")
    E("    s_mul_hi_u32 s4, s2, s3")
    E("    s_mul_i32 s5, s4, 29")
    E("    s_sub_u32 s5, s2, s5")
    V_LANE, V_LDSW, V_LDSR, V_T, V_XOFF, V_WOFF, V_POS, V_HALF = 1, 2, 3, 4, 5, 6, 7, 8
    V_T2, V_T3, V_WOFF2 = 9, 10, 11
    ACC0, XB0, AB0, WST0 = 16, 48, 80, 88
    gemm_lane_setup(V_LANE, V_LDSW, V_LDSR, V_T)
    E(f"    v_lshrrev_b32 v{V_T}, 6, v0")
    E(f"    v_lshlrev_b32 v{V_POS}, 5, v{V_T}")
    E(f"    v_and_b32 v{V_T}, 31, v0")
    E(f"    v_add_u32 v{V_POS}, v{V_POS}, v{V_T}")
    E("    s_lshl_b32 s6, s4, 7")
    E(f"    v_add_u32 v{V_POS}, s6, v{V_POS}")
    E(f"    v_bfe_u32 v{V_HALF}, v0, 5, 1")
    E(f"    s_movk_i32 s7, 896")
    E(f"    v_mul_lo_u32 v{V_XOFF}, v{V_POS}, s7")
    E(f"    v_lshl_add_u32 v{V_XOFF}, v{V_HALF}, 4, v{V_XOFF}")
    E("    s_waitcnt lgkmcnt(0)")
    srd(8, 20, 21, S * D * 2)
    lspec = L("k1spec")
    lqkv = L("k1qkv")
    E("    s_cmp_eq_u32 s5, 28")
    E(f"    s_cbranch_scc1 {lspec}")
    E("    s_cmp_ge_u32 s5, 7")
    E(f"    s_cbranch_scc1 {lqkv}")

    def normal_path(stride, wbase_lo, wbase_hi, total, colbyte_sgpr):
        E(f"    s_add_u32 s12, s{wbase_lo}, s{colbyte_sgpr}")
        E(f"    s_addc_u32 s13, s{wbase_hi}, 0")
        E(f"    s_sub_u32 s14, {total}, s{colbyte_sgpr}")
        E(f"    s_mov_b32 s15, 0x00020000")
        E(f"    v_lshrrev_b32 v{V_T}, 3, v0")
        E(f"    s_movk_i32 s7, {stride}")
        E(f"    v_mul_lo_u32 v{V_WOFF}, v{V_T}, s7")
        E(f"    v_and_b32 v{V_T}, 7, v0")
        E(f"    v_lshl_add_u32 v{V_WOFF}, v{V_T}, 4, v{V_WOFF}")
        E(f"    v_add_u32 v{V_WOFF2}, {32*stride}, v{V_WOFF}")
        def wload(c):
            E(f"    s_mov_b32 s41, {c*64*stride}")
            E(f"    buffer_load_dwordx4 v[{WST0}:{WST0+3}], v{V_WOFF}, s[12:15], s41 offen")
            E(f"    buffer_load_dwordx4 v[{WST0+4}:{WST0+7}], v{V_WOFF2}, s[12:15], s41 offen")
            return 2
        gemm_body(7, 2, 1, wload, 896, ACC0, XB0, AB0, WST0, V_XOFF, V_LDSW, V_LDSR)

    E("    s_lshl_b32 s6, s5, 7")
    normal_path(896, 22, 23, 448 * 448 * 2, 6)
    srd(16, 32, 33, SZ_QA, WS_QA)
    E("    s_lshl_b32 s6, s5, 4")
    for nt in range(2):
        for q in range(4):
            a = ACC0 + nt * 16 + q * 4
            E(f"    v_add_u32 v{V_T}, {nt*8+q*2}, v{V_HALF}")
            E(f"    v_add_u32 v{V_T}, s6, v{V_T}")
            E(f"    v_mul_u32_u24 v{V_T2}, 147, v{V_T}")
            E(f"    v_lshrrev_b32 v{V_T2}, 10, v{V_T2}")
            E(f"    v_mul_u32_u24 v{V_T3}, 7, v{V_T2}")
            E(f"    v_sub_u32 v{V_T}, v{V_T}, v{V_T3}")
            E(f"    v_lshlrev_b32 v{V_T3}, 17, v{V_T2}")
            E(f"    v_lshl_add_u32 v{V_T3}, v{V_POS}, 6, v{V_T3}")
            E(f"    v_lshl_add_u32 v{V_T3}, v{V_T}, 3, v{V_T3}")
            E(f"    v_cvt_pk_bf16_f32 v12, v{a}, v{a+1}")
            E(f"    v_cvt_pk_bf16_f32 v13, v{a+2}, v{a+3}")
            E(f"    buffer_store_dwordx2 v[12:13], v{V_T3}, s[16:19], 0 offen")
            E(f"    v_cmp_eq_u32 vcc, 6, v{V_T}")
            E(f"    v_mov_b32 v14, 0")
            E(f"    v_mov_b32 v15, 0")
            E(f"    s_and_saveexec_b64 s[36:37], vcc")
            lsk = L("k1z")
            E(f"    s_cbranch_execz {lsk}")
            E(f"    buffer_store_dwordx2 v[14:15], v{V_T3}, s[16:19], 0 offen offset:8")
            E(f"{lsk}:")
            E(f"    s_mov_b64 exec, s[36:37]")
    E(f"    s_branch {lend}")

    E(f"{lqkv}:")
    E("    s_sub_u32 s6, s5, 7")
    E("    s_lshl_b32 s6, s6, 7")
    normal_path(2688, 28, 29, 448 * 1344 * 2, 6)
    srd(16, 32, 33, SZ_QKVB, WS_QKVB)
    E(f"    s_movk_i32 s7, 2688")
    E(f"    v_mul_lo_u32 v{V_T3}, v{V_POS}, s7")
    E(f"    v_lshl_add_u32 v{V_T3}, v{V_HALF}, 3, v{V_T3}")
    E(f"    v_add_u32 v{V_T3}, s6, v{V_T3}")
    for nt in range(2):
        for q in range(4):
            a = ACC0 + nt * 16 + q * 4
            E(f"    v_cvt_pk_bf16_f32 v12, v{a}, v{a+1}")
            E(f"    v_cvt_pk_bf16_f32 v13, v{a+2}, v{a+3}")
            E(f"    buffer_store_dwordx2 v[12:13], v{V_T3}, s[16:19], 0 offen offset:{(nt*32+q*8)*2}")
            E(f"    s_nop 0")
    E(f"    s_branch {lend}")

    E(f"{lspec}:")
    srd(12, 24, 25, 448 * 28 * 2)
    srd(44, 26, 27, 448 * 28 * 2)
    srd(48, 30, 31, 448 * 2)
    E(f"    v_lshrrev_b32 v{V_T}, 3, v0")
    E(f"    v_and_b32 v{V_T2}, 7, v0")
    VOK, VOV, VOG = 96, 100, 104
    for j in range(4):
        E(f"    v_lshlrev_b32 v12, 3, v{V_T2}")
        E(f"    v_add_u32 v12, {2*j}, v12")
        E(f"    v_mul_u32_u24 v13, 56, v{V_T}")
        E(f"    v_lshl_add_u32 v13, v12, 1, v13")
        E(f"    v_mov_b32 v14, 0x7fffffff")
        E(f"    v_cmp_gt_u32 vcc, 28, v12")
        E(f"    s_nop 1")
        E(f"    v_cndmask_b32 v{VOK+j}, v14, v13, vcc")
        E(f"    v_subrev_u32 v13, 56, v13")
        E(f"    v_subrev_u32 v12, 28, v12")
        E(f"    v_cmp_gt_u32 vcc, 28, v12")
        E(f"    s_nop 1")
        E(f"    v_cndmask_b32 v{VOV+j}, v14, v13, vcc")
    E(f"    v_lshlrev_b32 v13, 1, v{V_T}")
    E(f"    v_mov_b32 v14, 0x7fffffff")
    E(f"    v_cmp_eq_u32 vcc, 7, v{V_T2}")
    E(f"    s_nop 1")
    E(f"    v_cndmask_b32 v{VOG}, v14, v13, vcc")
    TMP = 108
    def wload_special(c):
        n = 0
        for hf in range(2):
            kb = c * 64 + hf * 32
            E(f"    s_mov_b32 s41, {kb*56}")
            E(f"    s_mov_b32 s42, {kb*2}")
            for j in range(4):
                E(f"    buffer_load_dword v{WST0+hf*4+j}, v{VOK+j}, s[12:15], s41 offen")
                E(f"    buffer_load_dword v{TMP+hf*4+j}, v{VOV+j}, s[44:47], s41 offen")
                n += 2
            E(f"    buffer_load_ushort v{TMP+8+hf}, v{VOG}, s[48:51], s42 offen")
            n += 1
        E(f"    s_waitcnt vmcnt(0)")
        for hf in range(2):
            for j in range(4):
                E(f"    v_or_b32 v{WST0+hf*4+j}, v{WST0+hf*4+j}, v{TMP+hf*4+j}")
            E(f"    v_or_b32 v{WST0+hf*4}, v{WST0+hf*4}, v{TMP+8+hf}")
        return 0
    gemm_body(7, 2, 1, wload_special, 896, ACC0, XB0, AB0, WST0, V_XOFF, V_LDSW, V_LDSR)
    srd(16, 32, 33, SZ_KA, WS_KA)
    srd(44, 32, 33, SZ_KA, WS_VT)
    srd(48, 32, 33, SZ_GATE, WS_GATE)
    E(f"    v_lshrrev_b32 v{V_T}, 5, v{V_POS}")
    E(f"    v_lshlrev_b32 v{V_T2}, 11, v{V_T}")
    E(f"    v_and_b32 v{V_T}, 31, v{V_POS}")
    E(f"    v_lshl_add_u32 v{V_T2}, v{V_T}, 4, v{V_T2}")
    E(f"    v_lshrrev_b32 v{V_T}, 5, v{V_POS}")
    E(f"    v_lshlrev_b32 v{V_T3}, 11, v{V_T}")
    E(f"    v_bfe_u32 v{V_T}, v{V_POS}, 4, 1")
    E(f"    v_lshl_add_u32 v{V_T3}, v{V_T}, 10, v{V_T3}")
    E(f"    v_bfe_u32 v{V_T}, v{V_POS}, 2, 1")
    E(f"    v_lshl_add_u32 v{V_T3}, v{V_T}, 9, v{V_T3}")
    E(f"    v_bfe_u32 v{V_T}, v{V_POS}, 3, 1")
    E(f"    v_lshl_add_u32 v{V_T3}, v{V_T}, 3, v{V_T3}")
    E(f"    v_and_b32 v{V_T}, 3, v{V_POS}")
    E(f"    v_lshl_add_u32 v{V_T3}, v{V_T}, 1, v{V_T3}")
    E(f"    v_mov_b32 v14, 0")
    E(f"    v_mov_b32 v15, 0")
    E(f"    v_mov_b32 v11, 0x3f80")
    for nt in range(2):
        for q in range(4):
            a = ACC0 + nt * 16 + q * 4
            for half in range(2):
                n4 = nt * 8 + q * 2 + half
                if n4 > 14:
                    continue
                E(f"    s_mov_b32 exec_lo, {0 if half else -1}")
                E(f"    s_mov_b32 exec_hi, {-1 if half else 0}")
                if n4 < 7:
                    d = n4 * 4
                    off = (d // 16) * 1024 + ((d % 16) // 8) * 512 + (d % 8) * 2
                    E(f"    v_cvt_pk_bf16_f32 v12, v{a}, v{a+1}")
                    E(f"    v_cvt_pk_bf16_f32 v13, v{a+2}, v{a+3}")
                    E(f"    buffer_store_dwordx2 v[12:13], v{V_T2}, s[16:19], 0 offen offset:{off}")
                    if d == 24:
                        E(f"    buffer_store_dwordx2 v[14:15], v{V_T2}, s[16:19], 0 offen offset:{off+8}")
                    E("    s_nop 0")
                elif n4 < 14:
                    dv = (n4 - 7) * 4
                    E(f"    v_cvt_pk_bf16_f32 v12, v{a}, v{a+1}")
                    E(f"    v_cvt_pk_bf16_f32 v13, v{a+2}, v{a+3}")
                    E(f"    buffer_store_short v12, v{V_T3}, s[44:47], 0 offen offset:{dv*16}")
                    E(f"    buffer_store_short_d16_hi v12, v{V_T3}, s[44:47], 0 offen offset:{(dv+1)*16}")
                    E(f"    buffer_store_short v13, v{V_T3}, s[44:47], 0 offen offset:{(dv+2)*16}")
                    E(f"    buffer_store_short_d16_hi v13, v{V_T3}, s[44:47], 0 offen offset:{(dv+3)*16}")
                    if dv == 24:
                        E(f"    buffer_store_short v11, v{V_T3}, s[44:47], 0 offen offset:{28*16}")
                        E(f"    buffer_store_short v14, v{V_T3}, s[44:47], 0 offen offset:{29*16}")
                        E(f"    buffer_store_short v14, v{V_T3}, s[44:47], 0 offen offset:{30*16}")
                        E(f"    buffer_store_short v14, v{V_T3}, s[44:47], 0 offen offset:{31*16}")
                    E("    s_nop 0")
                else:
                    E(f"    v_lshlrev_b32 v12, 2, v{V_POS}")
                    E(f"    buffer_store_dword v{a}, v12, s[48:51], 0 offen")
    E("    s_mov_b64 exec, -1")
    E(f"{lend}:")
    E("    s_endpgm")
    kernel_desc(name, 128)

def gen_k3():
    name = "k3_out_kernel"
    E(".text")
    E(".p2align 8")
    E(f".globl {name}")
    E(f".type {name},@function")
    E(f"{name}:")
    lend = L("k3end")
    E("    s_cmp_ge_u32 s2, 224")
    E(f"    s_cbranch_scc1 {lend}")
    E("    s_load_dwordx2 s[20:21], s[0:1], 88")
    E("    s_load_dwordx2 s[22:23], s[0:1], 32")
    E("    s_load_dwordx2 s[24:25], s[0:1], 56")
    E("    s_load_dwordx2 s[26:27], s[0:1], 72")
    E(f"    s_mov_b32 s3, {(1<<32)//7 + 1}")
    E("    s_mul_hi_u32 s4, s2, s3")
    E("    s_mul_i32 s5, s4, 7")
    E("    s_sub_u32 s5, s2, s5")
    V_LANE, V_LDSW, V_LDSR, V_T, V_XOFF, V_WOFF, V_POS, V_HALF = 1, 2, 3, 4, 5, 6, 7, 8
    V_T2, V_T3, V_WOFF2 = 9, 10, 11
    ACC0, XB0, AB0, WST0 = 16, 48, 80, 88
    gemm_lane_setup(V_LANE, V_LDSW, V_LDSR, V_T)
    E(f"    v_lshrrev_b32 v{V_T}, 7, v0")
    E(f"    v_lshlrev_b32 v{V_POS}, 5, v{V_T}")
    E(f"    v_and_b32 v{V_T}, 31, v0")
    E(f"    v_add_u32 v{V_POS}, v{V_POS}, v{V_T}")
    E("    s_lshl_b32 s6, s4, 6")
    E(f"    v_add_u32 v{V_POS}, s6, v{V_POS}")
    E(f"    v_bfe_u32 v{V_HALF}, v0, 5, 1")
    E(f"    s_movk_i32 s7, 1792")
    E(f"    v_mul_lo_u32 v{V_XOFF}, v{V_POS}, s7")
    E(f"    v_lshl_add_u32 v{V_XOFF}, v{V_HALF}, 4, v{V_XOFF}")
    E(f"    v_bfe_u32 v{V_T}, v0, 6, 1")
    E(f"    v_lshl_add_u32 v{V_LDSR}, v{V_T}, 6, v{V_LDSR}")
    E("    s_waitcnt lgkmcnt(0)")
    srd(8, 20, 21, SZ_OAB, WS_OAB)
    E("    s_lshl_b32 s6, s5, 7")
    E(f"    s_add_u32 s12, s22, s6")
    E(f"    s_addc_u32 s13, s23, 0")
    E(f"    s_sub_u32 s14, {448*448*2}, s6")
    E(f"    s_mov_b32 s15, 0x00020000")
    E(f"    s_add_u32 s44, s24, s6")
    E(f"    s_addc_u32 s45, s25, 0")
    E(f"    s_sub_u32 s46, {448*448*2}, s6")
    E(f"    s_mov_b32 s47, 0x00020000")
    stride = 896
    E(f"    v_lshrrev_b32 v{V_T}, 3, v0")
    E(f"    s_movk_i32 s7, {stride}")
    E(f"    v_mul_lo_u32 v{V_WOFF}, v{V_T}, s7")
    E(f"    v_and_b32 v{V_T}, 7, v0")
    E(f"    v_lshl_add_u32 v{V_WOFF}, v{V_T}, 4, v{V_WOFF}")
    E(f"    v_add_u32 v{V_WOFF2}, {32*stride}, v{V_WOFF}")
    def wload(c):
        sr = 12 if c < 7 else 44
        E(f"    s_mov_b32 s41, {(c%7)*64*stride}")
        E(f"    buffer_load_dwordx4 v[{WST0}:{WST0+3}], v{V_WOFF}, s[{sr}:{sr+3}], s41 offen")
        E(f"    buffer_load_dwordx4 v[{WST0+4}:{WST0+7}], v{V_WOFF2}, s[{sr}:{sr+3}], s41 offen")
        return 2
    gemm_body(14, 1, 1, wload, 1792, ACC0, XB0, AB0, WST0, V_XOFF, V_LDSW, V_LDSR)
    srd(16, 26, 27, S * D * 2)
    E(f"    s_movk_i32 s7, 896")
    E(f"    v_mul_lo_u32 v{V_T3}, v{V_POS}, s7")
    E(f"    v_lshl_add_u32 v{V_T3}, v{V_HALF}, 3, v{V_T3}")
    E(f"    v_add_u32 v{V_T3}, s6, v{V_T3}")
    E(f"    v_bfe_u32 v{V_T}, v0, 6, 1")
    E(f"    v_lshl_add_u32 v{V_T3}, v{V_T}, 6, v{V_T3}")
    for q in range(4):
        a = ACC0 + q * 4
        E(f"    v_cvt_pk_bf16_f32 v12, v{a}, v{a+1}")
        E(f"    v_cvt_pk_bf16_f32 v13, v{a+2}, v{a+3}")
        E(f"    buffer_store_dwordx2 v[12:13], v{V_T3}, s[16:19], 0 offen offset:{q*16}")
        E("    s_nop 0")
    E(f"{lend}:")
    E("    s_endpgm")
    kernel_desc(name, 128)

import math
CSC = (28 ** -0.5) * math.log2(math.e)
import struct
def f32bits(x):
    return struct.unpack("<I", struct.pack("<f", x))[0]

def gen_k2():
    name = "k2_attn_kernel"
    E(".text")
    E(".p2align 8")
    E(f".globl {name}")
    E(f".type {name},@function")
    E(f"{name}:")
    lend = L("k2end")
    E("    s_cmp_ge_u32 s2, 256")
    E(f"    s_cbranch_scc1 {lend}")
    E("    s_load_dwordx2 s[20:21], s[0:1], 88")
    E("    s_lshr_b32 s4, s2, 4")
    E("    s_and_b32 s5, s2, 15")
    V_LANE, V_T, V_T2, V_GOFF, V_LW, V_LR, V_POS, V_HALF, V_M = 1, 2, 3, 4, 5, 6, 7, 8, 9
    V_A, V_B, V_TM = 10, 11, 12
    Q0, SREG, PREG, OREG, KF, VF, STG = 16, 32, 48, 64, 80, 88, 96
    E(f"    v_and_b32 v{V_LANE}, 63, v0")
    E(f"    v_lshrrev_b32 v{V_T}, 6, v0")
    E("    s_nop 0")
    E(f"    v_readfirstlane_b32 s6, v{V_T}")
    E("    s_and_b32 s7, s6, 3")
    E("    s_lshr_b32 s34, s6, 2")
    E(f"    v_bfe_u32 v{V_HALF}, v0, 5, 1")
    E("    s_lshl_b32 s35, s5, 7")
    E("    s_lshl_b32 s36, s7, 5")
    E("    s_add_u32 s35, s35, s36")
    E(f"    v_and_b32 v{V_T}, 31, v0")
    E(f"    v_add_u32 v{V_POS}, s35, v{V_T}")
    E("    s_waitcnt lgkmcnt(0)")
    srd(8, 20, 21, SZ_QA, WS_QA)
    srd(12, 20, 21, 2 * SZ_KA, WS_KA)
    E("    s_lshl_b32 s36, s4, 17")
    E(f"    v_lshlrev_b32 v{V_T}, 6, v{V_POS}")
    E(f"    v_lshl_add_u32 v{V_T}, v{V_HALF}, 4, v{V_T}")
    E(f"    v_add_u32 v{V_T}, s36, v{V_T}")
    E(f"    buffer_load_dwordx4 v[{Q0}:{Q0+3}], v{V_T}, s[8:11], 0 offen")
    E(f"    buffer_load_dwordx4 v[{Q0+4}:{Q0+7}], v{V_T}, s[8:11], 0 offen offset:32")
    E(f"    v_lshrrev_b32 v{V_T}, 8, v0")
    E(f"    v_lshlrev_b32 v{V_GOFF}, 16, v{V_T}")
    E(f"    v_and_b32 v{V_T2}, 255, v0")
    E(f"    v_lshl_add_u32 v{V_GOFF}, v{V_T2}, 4, v{V_GOFF}")
    E(f"    v_lshlrev_b32 v{V_LW}, 12, v{V_T}")
    E(f"    v_lshl_add_u32 v{V_LW}, v{V_T2}, 4, v{V_LW}")
    E(f"    v_lshlrev_b32 v{V_LR}, 4, v{V_LANE}")
    E("    s_lshl_b32 s36, s34, 12")
    E(f"    v_add_u32 v{V_LR}, s36, v{V_LR}")
    for i in range(16):
        E(f"    v_mov_b32 v{OREG+i}, 0")
    E(f"    v_mov_b32 v{V_M}, 0xf149f2ca")
    E(f"    s_mov_b32 s37, {f32bits(CSC)}")
    E(f"    s_mov_b32 s38, 0x41000000")
    E("    s_mov_b32 s39, 0x20000")
    def gload(sidx_sgpr):
        E(f"    buffer_load_dwordx4 v[{STG}:{STG+3}], v{V_GOFF}, s[12:15], s{sidx_sgpr} offen")
        E(f"    s_add_u32 s43, s{sidx_sgpr}, s39")
        E(f"    buffer_load_dwordx4 v[{STG+4}:{STG+7}], v{V_GOFF}, s[12:15], s43 offen")
    def lwrite(buf):
        E(f"    ds_write_b128 v{V_LW}, v[{STG}:{STG+3}] offset:{buf*16384}")
        E(f"    ds_write_b128 v{V_LW}, v[{STG+4}:{STG+7}] offset:{buf*16384+8192}")
    E("    s_mov_b32 s42, 0")
    gload(42)
    E("    s_waitcnt vmcnt(0)")
    lwrite(0)
    E("    s_waitcnt lgkmcnt(0)")
    E("    s_barrier")
    E("    s_mov_b32 s41, 0")
    lloop = L("k2loop")
    E(f"{lloop}:")
    def tile(buf, tt):
        o = buf * 16384 + tt * 2048
        E(f"    ds_read_b128 v[{KF}:{KF+3}], v{V_LR} offset:{o}")
        E(f"    ds_read_b128 v[{KF+4}:{KF+7}], v{V_LR} offset:{o+1024}")
        E(f"    ds_read_b128 v[{VF}:{VF+3}], v{V_LR} offset:{o+8192}")
        E(f"    ds_read_b128 v[{VF+4}:{VF+7}], v{V_LR} offset:{o+8192+1024}")
        E("    s_waitcnt lgkmcnt(2)")
        E(f"    v_mfma_f32_32x32x16_bf16 v[{SREG}:{SREG+15}], v[{KF}:{KF+3}], v[{Q0}:{Q0+3}], 0")
        E(f"    v_mfma_f32_32x32x16_bf16 v[{SREG}:{SREG+15}], v[{KF+4}:{KF+7}], v[{Q0+4}:{Q0+7}], v[{SREG}:{SREG+15}]")
        E("    s_nop 11")
        E(f"    v_max3_f32 v{V_A}, v{SREG}, v{SREG+1}, v{SREG+2}")
        for i in range(3, 15, 2):
            E(f"    v_max3_f32 v{V_A}, v{V_A}, v{SREG+i}, v{SREG+i+1}")
        E(f"    v_max_f32 v{V_A}, v{V_A}, v{SREG+15}")
        E(f"    v_mov_b32 v{V_B}, v{V_A}")
        E("    s_nop 1")
        E(f"    v_permlane32_swap_b32 v{V_A}, v{V_B}")
        E(f"    v_max_f32 v{V_A}, v{V_A}, v{V_B}")
        E(f"    v_mul_f32 v{V_TM}, s37, v{V_A}")
        E(f"    v_sub_f32 v{V_A}, v{V_TM}, v{V_M}")
        E(f"    v_cmp_lt_f32 vcc, s38, v{V_A}")
        lsk = L("k2sk")
        E(f"    s_cbranch_vccz {lsk}")
        E(f"    v_max_f32 v{V_TM}, v{V_TM}, v{V_M}")
        E(f"    v_sub_f32 v{V_A}, v{V_M}, v{V_TM}")
        E(f"    v_exp_f32 v{V_A}, v{V_A}")
        E(f"    v_mov_b32 v{V_M}, v{V_TM}")
        for i in range(16):
            E(f"    v_mul_f32 v{OREG+i}, v{OREG+i}, v{V_A}")
        E(f"{lsk}:")
        for i in range(16):
            E(f"    v_fma_f32 v{SREG+i}, v{SREG+i}, s37, -v{V_M}")
        for i in range(16):
            E(f"    v_exp_f32 v{SREG+i}, v{SREG+i}")
        E("    s_nop 0")
        for i in range(8):
            E(f"    v_cvt_pk_bf16_f32 v{PREG+i}, v{SREG+2*i}, v{SREG+2*i+1}")
        E("    s_waitcnt lgkmcnt(0)")
        E("    s_nop 1")
        E(f"    v_mfma_f32_32x32x16_bf16 v[{OREG}:{OREG+15}], v[{VF}:{VF+3}], v[{PREG}:{PREG+3}], v[{OREG}:{OREG+15}]")
        E(f"    v_mfma_f32_32x32x16_bf16 v[{OREG}:{OREG+15}], v[{VF+4}:{VF+7}], v[{PREG+4}:{PREG+7}], v[{OREG}:{OREG+15}]")
    for buf in range(2):
        lnl = L("k2nl")
        E("    s_add_u32 s42, s41, 1")
        E("    s_cmp_ge_u32 s42, 16")
        E(f"    s_cbranch_scc1 {lnl}")
        E("    s_lshl_b32 s42, s42, 12")
        gload(42)
        E(f"{lnl}:")
        tile(buf, 0)
        tile(buf, 1)
        E("    s_waitcnt vmcnt(0)")
        lwrite(1 - buf)
        E("    s_waitcnt lgkmcnt(0)")
        E("    s_barrier")
        E("    s_add_u32 s41, s41, 1")
    E("    s_cmp_lt_u32 s41, 16")
    E(f"    s_cbranch_scc1 {lloop}")
    E("    s_nop 15")
    lupper = L("k2up")
    E("    s_cmp_ge_u32 s6, 4")
    E(f"    s_cbranch_scc1 {lupper}")
    E("    s_barrier")
    E(f"    v_lshlrev_b32 v{V_T}, 4, v{V_LANE}")
    E("    s_mul_i32 s36, s7, 5120")
    E(f"    v_add_u32 v{V_T}, s36, v{V_T}")
    for i in range(4):
        E(f"    ds_read_b128 v[{SREG+4*i}:{SREG+4*i+3}], v{V_T} offset:{i*1024}")
    E(f"    v_lshlrev_b32 v{V_T2}, 2, v{V_LANE}")
    E(f"    v_add_u32 v{V_T2}, s36, v{V_T2}")
    E(f"    ds_read_b32 v{V_A}, v{V_T2} offset:4096")
    srd(16, 20, 21, SZ_GATE, WS_GATE)
    E(f"    v_lshlrev_b32 v{V_T}, 2, v{V_POS}")
    E(f"    buffer_load_dword v{V_B}, v{V_T}, s[16:19], 0 offen")
    E("    s_waitcnt lgkmcnt(0)")
    E(f"    v_max_f32 v{V_TM}, v{V_M}, v{V_A}")
    E(f"    v_sub_f32 v{V_M}, v{V_M}, v{V_TM}")
    E(f"    v_sub_f32 v{V_A}, v{V_A}, v{V_TM}")
    E(f"    v_exp_f32 v{V_M}, v{V_M}")
    E(f"    v_exp_f32 v{V_A}, v{V_A}")
    E("    s_nop 0")
    for i in range(16):
        E(f"    v_mul_f32 v{OREG+i}, v{OREG+i}, v{V_M}")
        E(f"    v_fmac_f32 v{OREG+i}, v{SREG+i}, v{V_A}")
    E(f"    v_mov_b32 v{V_T}, v{OREG+12}")
    E(f"    v_mov_b32 v{V_T2}, v{OREG+12}")
    E("    s_nop 1")
    E(f"    v_permlane32_swap_b32 v{V_T}, v{V_T2}")
    E(f"    v_rcp_f32 v{V_T2}, v{V_T2}")
    E("    s_waitcnt vmcnt(0)")
    E(f"    v_mul_f32 v{V_B}, 0xbfb8aa3b, v{V_B}")
    E(f"    v_exp_f32 v{V_B}, v{V_B}")
    E("    s_nop 0")
    E(f"    v_add_f32 v{V_B}, 1.0, v{V_B}")
    E(f"    v_rcp_f32 v{V_B}, v{V_B}")
    E("    s_nop 0")
    E(f"    v_mul_f32 v{V_T2}, v{V_T2}, v{V_B}")
    srd(16, 20, 21, SZ_OAB, WS_OAB)
    E("    s_movk_i32 s36, 1792")
    E(f"    v_mul_lo_u32 v{V_T}, v{V_POS}, s36")
    E("    s_mul_i32 s36, s4, 56")
    E(f"    v_add_u32 v{V_T}, s36, v{V_T}")
    E(f"    v_lshl_add_u32 v{V_T}, v{V_HALF}, 3, v{V_T}")
    for q in range(4):
        for i in range(4):
            E(f"    v_mul_f32 v{OREG+4*q+i}, v{OREG+4*q+i}, v{V_T2}")
        E(f"    v_cvt_pk_bf16_f32 v{PREG+2*q}, v{OREG+4*q}, v{OREG+4*q+1}")
        E(f"    v_cvt_pk_bf16_f32 v{PREG+2*q+1}, v{OREG+4*q+2}, v{OREG+4*q+3}")
        if q == 3:
            E("    s_mov_b32 exec_hi, 0")
        E(f"    buffer_store_dwordx2 v[{PREG+2*q}:{PREG+2*q+1}], v{V_T}, s[16:19], 0 offen offset:{q*16}")
    E("    s_mov_b64 exec, -1")
    E(f"    s_branch {lend}")
    E(f"{lupper}:")
    E(f"    v_lshlrev_b32 v{V_T}, 4, v{V_LANE}")
    E("    s_mul_i32 s36, s7, 5120")
    E(f"    v_add_u32 v{V_T}, s36, v{V_T}")
    for i in range(4):
        E(f"    ds_write_b128 v{V_T}, v[{OREG+4*i}:{OREG+4*i+3}] offset:{i*1024}")
    E(f"    v_lshlrev_b32 v{V_T2}, 2, v{V_LANE}")
    E(f"    v_add_u32 v{V_T2}, s36, v{V_T2}")
    E(f"    ds_write_b32 v{V_T2}, v{V_M} offset:4096")
    E("    s_waitcnt lgkmcnt(0)")
    E("    s_barrier")
    srd(8, 20, 21, SZ_QKVB, WS_QKVB)
    E(f"    v_lshrrev_b32 v{V_T}, 1, v{V_LANE}")
    E(f"    v_add_u32 v{V_POS}, s35, v{V_T}")
    E(f"    v_and_b32 v{V_T2}, 1, v{V_LANE}")
    E("    s_movk_i32 s36, 2688")
    E(f"    v_mul_lo_u32 v{V_GOFF}, v{V_POS}, s36")
    E(f"    v_mul_u32_u24 v{V_T}, 28, v{V_T2}")
    E(f"    v_add_u32 v{V_GOFF}, v{V_GOFF}, v{V_T}")
    E("    s_mul_i32 s36, s4, 56")
    E(f"    v_add_u32 v{V_GOFF}, s36, v{V_GOFF}")
    QB, KB, VB = 16, 24, 88
    E(f"    buffer_load_dwordx4 v[{QB}:{QB+3}], v{V_GOFF}, s[8:11], 0 offen")
    E(f"    buffer_load_dwordx3 v[{QB+4}:{QB+6}], v{V_GOFF}, s[8:11], 0 offen offset:16")
    for w in range(8):
        E(f"    v_subrev_u32 v{V_T}, {2*w*2688 - 896}, v{V_GOFF}")
        E(f"    v_cmp_le_u32 vcc, {2*w}, v{V_POS}")
        E(f"    v_mov_b32 v{V_A}, 0x7ffffff0")
        E("    s_nop 0")
        E(f"    v_cndmask_b32 v{V_T}, v{V_A}, v{V_T}, vcc")
        E(f"    buffer_load_dwordx4 v[{KB+8*w}:{KB+8*w+3}], v{V_T}, s[8:11], 0 offen")
        E(f"    buffer_load_dwordx3 v[{KB+8*w+4}:{KB+8*w+6}], v{V_T}, s[8:11], 0 offen offset:16")
        E(f"    buffer_load_dwordx4 v[{VB+8*w}:{VB+8*w+3}], v{V_T}, s[8:11], 0 offen offset:896")
        E(f"    buffer_load_dwordx3 v[{VB+8*w+4}:{VB+8*w+6}], v{V_T}, s[8:11], 0 offen offset:912")
    srd(16, 20, 21, SZ_GATE, WS_GATE)
    E(f"    v_lshlrev_b32 v{V_T}, 2, v{V_POS}")
    E(f"    buffer_load_dword v{V_B}, v{V_T}, s[16:19], 0 offen")
    E("    s_waitcnt vmcnt(0)")
    LG = 152
    for w in range(8):
        E(f"    v_mov_b32 v{LG+w}, 0")
        for j in range(7):
            E(f"    v_dot2_f32_bf16 v{LG+w}, v{QB+j}, v{KB+8*w+j}, v{LG+w}")
    E("    s_nop 1")
    for w in range(8):
        E(f"    v_add_f32_dpp v{LG+8}, v{LG+w}, v{LG+w} quad_perm:[1,0,3,2] row_mask:0xf bank_mask:0xf")
        E(f"    v_mul_f32 v{LG+w}, s37, v{LG+8}")
        E(f"    v_cmp_le_u32 vcc, {2*w}, v{V_POS}")
        E(f"    v_mov_b32 v{V_A}, 0xf149f2ca")
        E("    s_nop 0")
        E(f"    v_cndmask_b32 v{LG+w}, v{V_A}, v{LG+w}, vcc")
    E(f"    v_max3_f32 v{V_A}, v{LG}, v{LG+1}, v{LG+2}")
    E(f"    v_max3_f32 v{V_A}, v{V_A}, v{LG+3}, v{LG+4}")
    E(f"    v_max3_f32 v{V_A}, v{V_A}, v{LG+5}, v{LG+6}")
    E(f"    v_max_f32 v{V_A}, v{V_A}, v{LG+7}")
    for w in range(8):
        E(f"    v_sub_f32 v{LG+w}, v{LG+w}, v{V_A}")
        E(f"    v_exp_f32 v{LG+w}, v{LG+w}")
    E("    s_nop 0")
    E(f"    v_add_f32 v{V_A}, v{LG}, v{LG+1}")
    for w in range(2, 8):
        E(f"    v_add_f32 v{V_A}, v{V_A}, v{LG+w}")
    E(f"    v_rcp_f32 v{V_A}, v{V_A}")
    E(f"    v_mul_f32 v{V_B}, 0x3fb8aa3b, v{V_B}")
    E(f"    v_exp_f32 v{V_B}, v{V_B}")
    E("    s_nop 0")
    E(f"    v_add_f32 v{V_B}, 1.0, v{V_B}")
    E(f"    v_rcp_f32 v{V_B}, v{V_B}")
    E("    s_nop 0")
    E(f"    v_mul_f32 v{V_A}, v{V_A}, v{V_B}")
    for w in range(8):
        E(f"    v_mul_f32 v{LG+w}, v{LG+w}, v{V_A}")
    AC = 168
    for j in range(14):
        E(f"    v_mov_b32 v{AC+j}, 0")
    for w in range(8):
        for j in range(7):
            E(f"    v_lshlrev_b32 v{V_T}, 16, v{VB+8*w+j}")
            E(f"    v_and_b32 v{V_T2}, 0xffff0000, v{VB+8*w+j}")
            E(f"    v_fmac_f32 v{AC+2*j}, v{V_T}, v{LG+w}")
            E(f"    v_fmac_f32 v{AC+2*j+1}, v{V_T2}, v{LG+w}")
    for j in range(7):
        E(f"    v_cvt_pk_bf16_f32 v{QB+j}, v{AC+2*j}, v{AC+2*j+1}")
    srd(16, 20, 21, SZ_OAB, WS_OAB)
    E("    s_movk_i32 s36, 1792")
    E(f"    v_mul_lo_u32 v{V_T}, v{V_POS}, s36")
    E(f"    v_and_b32 v{V_T2}, 1, v{V_LANE}")
    E(f"    v_mul_u32_u24 v{V_T2}, 28, v{V_T2}")
    E(f"    v_add_u32 v{V_T}, v{V_T}, v{V_T2}")
    E("    s_mul_i32 s36, s4, 56")
    E("    s_add_u32 s36, s36, 896")
    E(f"    v_add_u32 v{V_T}, s36, v{V_T}")
    E(f"    buffer_store_dwordx4 v[{QB}:{QB+3}], v{V_T}, s[16:19], 0 offen")
    E(f"    buffer_store_dwordx3 v[{QB+4}:{QB+6}], v{V_T}, s[16:19], 0 offen offset:16")
    E(f"{lend}:")
    E("    s_endpgm")
    kernel_desc(name, 192)

def main():
    hdr = open("cdna_kernels/" + NAME + ".s.ref").read().split("\n")
    for l in hdr:
        if l.startswith("; @launch"):
            break
        if l.startswith(";"):
            E(l)
    E("; @launch kernel=k1_proj_kernel grid=(464,1,1) block=(256,1,1) lds=24576")
    E("; @launch kernel=k2_attn_kernel grid=(256,1,1) block=(512,1,1) lds=32768")
    E("; @launch kernel=k3_out_kernel grid=(224,1,1) block=(256,1,1) lds=24576")
    E('.amdgcn_target "amdgcn-amd-amdhsa--gfx950"')
    E(".text")
    gen_k1()
    gen_k2()
    gen_k3()
    open("cdna_kernels/" + NAME + ".s", "w").write("\n".join(out) + "\n")

main()
```

```python
import sys

NAME = "gated_mix__grouped_kv_mqa__sliding_local_dilated__prompt"
S = 2048
D = 448
WS_QA = 0x000000
WS_KA = 0x200000
WS_VT = 0x220000
WS_GATE = 0x240000
WS_QKVB = 0x300000
WS_OAB = 0x900000
SZ_QA = 16 * 2048 * 32 * 2
SZ_KA = 2048 * 32 * 2
SZ_GATE = 2048 * 4
SZ_QKVB = 2048 * 1344 * 2
SZ_OAB = 2048 * 896 * 2

out = []
def E(s=""):
    out.append(s)

_lbl = [0]
def L(prefix="L"):
    _lbl[0] += 1
    return f"{prefix}_{_lbl[0]}"

def srd(dst, base_lo, base_hi, nbytes, add=0):
    if add:
        E(f"    s_add_u32 s{dst}, s{base_lo}, {add}")
        E(f"    s_addc_u32 s{dst+1}, s{base_hi}, 0")
    else:
        E(f"    s_mov_b32 s{dst}, s{base_lo}")
        E(f"    s_mov_b32 s{dst+1}, s{base_hi}")
    E(f"    s_mov_b32 s{dst+2}, {nbytes}")
    E(f"    s_mov_b32 s{dst+3}, 0x00020000")

import os
STAMP = os.environ.get("STAMP")
_stamps = []
def stamp(idx):
    if STAMP:
        E(f"    s_memtime s[{60+2*idx}:{61+2*idx}]")
def stamp_flush(n):
    if STAMP:
        lsk = L("st")
        E("    s_waitcnt lgkmcnt(0)")
        E("    s_cmp_lg_u32 s2, 100")
        E(f"    s_cbranch_scc1 {lsk}")
        E("    v_cmp_eq_u32 vcc, 0, v0")
        E("    s_and_saveexec_b64 s[90:91], vcc")
        E(f"    s_cbranch_execz {lsk}")
        E("    s_load_dwordx2 s[92:93], s[0:1], 80")
        E("    s_waitcnt lgkmcnt(0)")
        for i in range(n):
            E(f"    s_sub_u32 s94, s{60+2*i}, s60")
            E(f"    v_mov_b32 v1, s94")
            E(f"    v_mov_b32 v2, {4*i}")
            E(f"    global_store_dword v2, v1, s[92:93]")
        E(f"{lsk}:")

def kernel_desc(name, vgpr, sgpr=102):
    E(".section .rodata,\"a\"")
    E(".p2align 6")
    E(f".amdhsa_kernel {name}")
    E(f"  .amdhsa_next_free_vgpr {vgpr}")
    E(f"  .amdhsa_next_free_sgpr {sgpr}")
    E(f"  .amdhsa_accum_offset {((vgpr+3)//4)*4}")
    E("  .amdhsa_group_segment_fixed_size 0")
    E("  .amdhsa_kernarg_size 96")
    E("  .amdhsa_user_sgpr_count 2")
    E("  .amdhsa_user_sgpr_kernarg_segment_ptr 1")
    E("  .amdhsa_system_sgpr_workgroup_id_x 1")
    E(".end_amdhsa_kernel")

LROW = 128
LW_BYTES = 448 * LROW

XROWS_MAX = 128
def gemm3(NW, nts, nxl, acc0, ab0, xf0, wst0, xst0, v_ldsw, v_ldsr0, v_ldsr1, v_xw, v_xr, bufbytes, woff_in_buf, presum=None):
    total = 14 + 7 * nxl
    for i in range(NW * 16):
        E(f"    v_mov_b32 v{acc0+i}, 0")
    def stage(c):
        base = (c % 2) * bufbytes
        for j in range(2):
            i = 2 * c + j
            E(f"    ds_write_b128 v{v_ldsw}, v[{wst0+4*i}:{wst0+4*i+3}] offset:{base + woff_in_buf + j*32*LROW}")
        for j in range(nxl):
            r = xst0 + (c * nxl + j) * 4
            E(f"    ds_write_b128 v{v_xw}, v[{r}:{r+3}] offset:{base + j*32*128}")
    def rd(c, ks):
        base = (c % 2) * bufbytes
        p = (c * 4 + ks) % 2
        b = ab0 + p * NW * 4
        for ii, nt in enumerate(nts):
            aa = b + ii * 4
            vr = v_ldsr0 if nt == 0 else v_ldsr1
            o = base + woff_in_buf + ks * 16 * LROW
            E(f"    ds_read_b64_tr_b16 v[{aa}:{aa+1}], v{vr} offset:{o}")
            E(f"    ds_read_b64_tr_b16 v[{aa+2}:{aa+3}], v{vr} offset:{o + 4*LROW}")
        x = xf0 + p * 4
        E(f"    ds_read_b128 v[{x}:{x+3}], v{v_xr[ks]} offset:{base}")
    stamp(1)
    E("    s_waitcnt vmcnt(0)")
    stamp(2)
    stage(0)
    E("    s_waitcnt lgkmcnt(0)")
    E("    s_barrier")
    for c in range(7):
        rd(c, 0)
        if c < 6:
            stage(c + 1)
        for ks in range(4):
            if ks < 3:
                rd(c, ks + 1)
                E(f"    s_waitcnt lgkmcnt({2*NW+1})")
            else:
                E("    s_waitcnt lgkmcnt(0)")
            p = (c * 4 + ks) % 2
            b = ab0 + p * NW * 4
            x = xf0 + p * 4
            for ii in range(NW):
                aa = b + ii * 4
                acc = acc0 + ii * 16
                E(f"    v_mfma_f32_32x32x16_bf16 v[{acc}:{acc+15}], v[{aa}:{aa+3}], v[{x}:{x+3}], v[{acc}:{acc+15}]")
        if c < 6:
            E("    s_barrier")
    E("    s_nop 15")
    E("    s_nop 3")

def x_lane_setup(v_xw, v_xr, v_row, v_t, v_t2, v_half):
    E(f"    v_bfe_u32 v{v_t}, v0, 3, 5")
    E(f"    v_and_b32 v{v_t2}, 7, v{v_t}")
    E(f"    v_lshlrev_b32 v{v_xw}, 7, v{v_t}")
    E(f"    v_and_b32 v{v_t}, 7, v0")
    E(f"    v_xor_b32 v{v_t}, v{v_t}, v{v_t2}")
    E(f"    v_lshl_add_u32 v{v_xw}, v{v_t}, 4, v{v_xw}")
    for ks in range(4):
        E(f"    v_add_u32 v{v_t}, {ks*2}, v{v_half}")
        E(f"    v_and_b32 v{v_t2}, 7, v{v_row}")
        E(f"    v_xor_b32 v{v_t}, v{v_t}, v{v_t2}")
        E(f"    v_lshlrev_b32 v{v_xr[ks]}, 7, v{v_row}")
        E(f"    v_lshl_add_u32 v{v_xr[ks]}, v{v_t}, 4, v{v_xr[ks]}")

def gemm_lane_setup(v_lane, v_ldsw, v_ldsr0, v_ldsr1, v_t, v_t2):
    E(f"    v_and_b32 v{v_lane}, 63, v0")
    E(f"    v_bfe_u32 v{v_t}, v0, 3, 5")
    E(f"    v_lshlrev_b32 v{v_ldsw}, 7, v{v_t}")
    E(f"    v_bfe_u32 v{v_t}, v0, 4, 1")
    E(f"    v_lshlrev_b32 v{v_t}, 2, v{v_t}")
    E(f"    v_and_b32 v{v_t2}, 7, v0")
    E(f"    v_xor_b32 v{v_t}, v{v_t}, v{v_t2}")
    E(f"    v_lshl_add_u32 v{v_ldsw}, v{v_t}, 4, v{v_ldsw}")
    E(f"    v_lshrrev_b32 v{v_t}, 5, v{v_lane}")
    E(f"    v_lshlrev_b32 v{v_ldsr0}, 3, v{v_t}")
    E(f"    v_bfe_u32 v{v_t}, v{v_lane}, 2, 2")
    E(f"    v_add_u32 v{v_ldsr0}, v{v_ldsr0}, v{v_t}")
    E(f"    v_lshlrev_b32 v{v_ldsr0}, 7, v{v_ldsr0}")
    E(f"    v_bfe_u32 v{v_t}, v{v_lane}, 4, 1")
    E(f"    v_lshl_add_u32 v{v_ldsr0}, v{v_t}, 5, v{v_ldsr0}")
    E(f"    v_and_b32 v{v_t}, 3, v{v_lane}")
    E(f"    v_lshl_add_u32 v{v_ldsr0}, v{v_t}, 3, v{v_ldsr0}")
    E(f"    v_bfe_u32 v{v_t}, v{v_lane}, 3, 1")
    E(f"    v_lshl_add_u32 v{v_ldsr0}, v{v_t}, 6, v{v_ldsr0}")
    E(f"    v_xor_b32 v{v_ldsr1}, 64, v{v_ldsr0}")

def gen_k1():
    name = "k1_proj_kernel"
    E(".p2align 8")
    E(f".globl {name}")
    E(f".type {name},@function")
    E(f"{name}:")
    lend = L("k1end")
    E("    s_cmp_ge_u32 s2, 464")
    E(f"    s_cbranch_scc1 {lend}")
    E("    s_load_dwordx2 s[20:21], s[0:1], 0")
    E("    s_load_dwordx2 s[22:23], s[0:1], 8")
    E("    s_load_dwordx2 s[24:25], s[0:1], 16")
    E("    s_load_dwordx2 s[26:27], s[0:1], 24")
    E("    s_load_dwordx2 s[28:29], s[0:1], 48")
    E("    s_load_dwordx2 s[30:31], s[0:1], 64")
    E("    s_load_dwordx2 s[32:33], s[0:1], 88")
    E(f"    s_mov_b32 s3, {(1<<32)//29 + 1}")
    E("    s_mul_hi_u32 s4, s2, s3")
    E("    s_mul_i32 s5, s4, 29")
    E("    s_sub_u32 s5, s2, s5")
    V_LANE, V_LDSW, V_LDSR, V_T, V_XOFF, V_WOFF, V_POS, V_HALF = 1, 2, 3, 4, 5, 6, 7, 8
    V_T2, V_T3, V_LDSR1 = 9, 10, 11
    ACC0, AB0, WST0, XB0 = 16, 48, 64, 120
    XF0, V_XW, V_XR, V_ROW, V_XG = 232, 240, [241, 242, 243, 244], 245, 246
    gemm_lane_setup(V_LANE, V_LDSW, V_LDSR, V_LDSR1, V_T, V_T2)
    E(f"    v_lshrrev_b32 v{V_T}, 6, v0")
    E(f"    v_lshlrev_b32 v{V_POS}, 5, v{V_T}")
    E(f"    v_and_b32 v{V_T}, 31, v0")
    E(f"    v_add_u32 v{V_POS}, v{V_POS}, v{V_T}")
    E("    s_lshl_b32 s6, s4, 7")
    E(f"    v_add_u32 v{V_POS}, s6, v{V_POS}")
    E(f"    v_bfe_u32 v{V_HALF}, v0, 5, 1")
    E(f"    s_movk_i32 s7, 896")
    E(f"    v_mul_lo_u32 v{V_XOFF}, v{V_POS}, s7")
    E(f"    v_lshl_add_u32 v{V_XOFF}, v{V_HALF}, 4, v{V_XOFF}")
    E("    s_waitcnt lgkmcnt(0)")
    srd(8, 20, 21, S * D * 2)
    E(f"    v_lshrrev_b32 v{V_T}, 6, v0")
    E(f"    v_lshlrev_b32 v{V_ROW}, 5, v{V_T}")
    E(f"    v_and_b32 v{V_T}, 31, v0")
    E(f"    v_add_u32 v{V_ROW}, v{V_ROW}, v{V_T}")
    x_lane_setup(V_XW, V_XR, V_ROW, V_T, V_T2, V_HALF)
    E(f"    v_lshrrev_b32 v{V_T}, 3, v0")
    E(f"    v_add_u32 v{V_T}, s6, v{V_T}")
    E(f"    s_movk_i32 s7, 896")
    E(f"    v_mul_lo_u32 v{V_XG}, v{V_T}, s7")
    E(f"    v_and_b32 v{V_T}, 7, v0")
    E(f"    v_lshl_add_u32 v{V_XG}, v{V_T}, 4, v{V_XG}")
    for c in range(7):
        for j in range(4):
            r = XB0 + (c * 4 + j) * 4
            E(f"    s_mov_b32 s40, {j*32*896}")
            E(f"    buffer_load_dwordx4 v[{r}:{r+3}], v{V_XG}, s[8:11], s40 offen offset:{c*128}")
    lspec = L("k1spec")
    lqkv = L("k1qkv")
    E("    s_cmp_eq_u32 s5, 28")
    E(f"    s_cbranch_scc1 {lspec}")
    E("    s_cmp_ge_u32 s5, 7")
    E(f"    s_cbranch_scc1 {lqkv}")

    def normal_path(stride, wbase_lo, wbase_hi, total, colbyte_sgpr):
        E(f"    s_add_u32 s12, s{wbase_lo}, s{colbyte_sgpr}")
        E(f"    s_addc_u32 s13, s{wbase_hi}, 0")
        E(f"    s_sub_u32 s14, {total}, s{colbyte_sgpr}")
        E(f"    s_mov_b32 s15, 0x00020000")
        E(f"    v_lshrrev_b32 v{V_T}, 3, v0")
        E(f"    s_movk_i32 s7, {stride}")
        E(f"    v_mul_lo_u32 v{V_WOFF}, v{V_T}, s7")
        E(f"    v_and_b32 v{V_T}, 7, v0")
        E(f"    v_lshl_add_u32 v{V_WOFF}, v{V_T}, 4, v{V_WOFF}")
        for i in range(14):
            E(f"    s_mov_b32 s41, {i*32*stride}")
            E(f"    buffer_load_dwordx4 v[{WST0+4*i}:{WST0+4*i+3}], v{V_WOFF}, s[12:15], s41 offen")
        gemm3(2, [0, 1], 4, ACC0, AB0, XF0, WST0, XB0, V_LDSW, V_LDSR, V_LDSR1, V_XW, V_XR, 24576, 16384)

    E("    s_lshl_b32 s6, s5, 7")
    normal_path(896, 22, 23, 448 * 448 * 2, 6)
    srd(16, 32, 33, SZ_QA, WS_QA)
    E("    s_lshl_b32 s6, s5, 4")
    for nt in range(2):
        for q in range(4):
            a = ACC0 + nt * 16 + q * 4
            E(f"    v_add_u32 v{V_T}, {nt*8+q*2}, v{V_HALF}")
            E(f"    v_add_u32 v{V_T}, s6, v{V_T}")
            E(f"    v_mul_u32_u24 v{V_T2}, 147, v{V_T}")
            E(f"    v_lshrrev_b32 v{V_T2}, 10, v{V_T2}")
            E(f"    v_mul_u32_u24 v{V_T3}, 7, v{V_T2}")
            E(f"    v_sub_u32 v{V_T}, v{V_T}, v{V_T3}")
            E(f"    v_lshlrev_b32 v{V_T3}, 17, v{V_T2}")
            E(f"    v_lshl_add_u32 v{V_T3}, v{V_POS}, 6, v{V_T3}")
            E(f"    v_lshl_add_u32 v{V_T3}, v{V_T}, 3, v{V_T3}")
            E(f"    v_cvt_pk_bf16_f32 v12, v{a}, v{a+1}")
            E(f"    v_cvt_pk_bf16_f32 v13, v{a+2}, v{a+3}")
            E(f"    buffer_store_dwordx2 v[12:13], v{V_T3}, s[16:19], 0 offen")
            E(f"    v_cmp_eq_u32 vcc, 6, v{V_T}")
            E(f"    v_mov_b32 v14, 0")
            E(f"    v_mov_b32 v15, 0")
            E(f"    s_and_saveexec_b64 s[36:37], vcc")
            lsk = L("k1z")
            E(f"    s_cbranch_execz {lsk}")
            E(f"    buffer_store_dwordx2 v[14:15], v{V_T3}, s[16:19], 0 offen offset:8")
            E(f"{lsk}:")
            E(f"    s_mov_b64 exec, s[36:37]")
    E(f"    s_branch {lend}")

    E(f"{lqkv}:")
    E("    s_sub_u32 s6, s5, 7")
    E("    s_lshl_b32 s6, s6, 7")
    normal_path(2688, 28, 29, 448 * 1344 * 2, 6)
    srd(16, 32, 33, SZ_QKVB, WS_QKVB)
    E(f"    s_movk_i32 s7, 2688")
    E(f"    v_mul_lo_u32 v{V_T3}, v{V_POS}, s7")
    E(f"    v_lshl_add_u32 v{V_T3}, v{V_HALF}, 3, v{V_T3}")
    E(f"    v_add_u32 v{V_T3}, s6, v{V_T3}")
    for nt in range(2):
        for q in range(4):
            a = ACC0 + nt * 16 + q * 4
            E(f"    v_cvt_pk_bf16_f32 v12, v{a}, v{a+1}")
            E(f"    v_cvt_pk_bf16_f32 v13, v{a+2}, v{a+3}")
            E(f"    buffer_store_dwordx2 v[12:13], v{V_T3}, s[16:19], 0 offen offset:{(nt*32+q*8)*2}")
            E(f"    s_nop 0")
    E(f"    s_branch {lend}")

    E(f"{lspec}:")
    srd(48, 30, 31, 448 * 2)
    E(f"    v_lshrrev_b32 v{V_T}, 3, v0")
    E(f"    v_and_b32 v{V_T2}, 7, v0")
    E(f"    v_cmp_gt_u32 vcc, 4, v{V_T2}")
    E(f"    v_mov_b32 v16, s26")
    E(f"    v_mov_b32 v17, s27")
    E(f"    v_mov_b32 v18, s24")
    E(f"    v_mov_b32 v19, s25")
    E(f"    v_cndmask_b32 v16, v16, v18, vcc")
    E(f"    v_cndmask_b32 v17, v17, v19, vcc")
    E(f"    v_and_b32 v18, 3, v{V_T2}")
    E(f"    v_mul_u32_u24 v19, 56, v{V_T}")
    E(f"    v_lshl_add_u32 v19, v18, 4, v19")
    E(f"    v_add_co_u32 v16, vcc, v16, v19")
    E("    s_nop 1")
    E(f"    v_addc_co_u32 v17, vcc, 0, v17, vcc")
    E(f"    v_cmp_eq_u32 vcc, 3, v18")
    E(f"    v_mov_b32 v20, 8")
    E("    s_nop 0")
    E(f"    v_cndmask_b32 v20, v20, 0, vcc")
    E(f"    v_add_co_u32 v22, vcc, v16, v20")
    E("    s_nop 1")
    E(f"    v_addc_co_u32 v23, vcc, 0, v17, vcc")
    E(f"    v_lshlrev_b32 v21, 1, v{V_T}")
    E(f"    v_mov_b32 v24, 0x7fffffff")
    E(f"    v_cmp_eq_u32 vcc, 7, v{V_T2}")
    E("    s_nop 1")
    E(f"    v_cndmask_b32 v21, v24, v21, vcc")
    for i in range(14):
        E(f"    global_load_dwordx2 v[{WST0+4*i}:{WST0+4*i+1}], v[16:17], off offset:{i*32*56 if i*32*56 < 4096 else 0}")
        E(f"    global_load_dwordx2 v[{WST0+4*i+2}:{WST0+4*i+3}], v[22:23], off offset:{i*32*56 if i*32*56 < 4096 else 0}")
        E(f"    s_mov_b32 s42, {i*64}")
        E(f"    buffer_load_ushort v{26+i}, v21, s[48:51], s42 offen")
        if (i + 1) * 32 * 56 >= 4096:
            E(f"    v_add_co_u32 v16, vcc, {32*56 if i*32*56 >= 4096 else (i+1)*32*56}, v16")
            E("    s_nop 1")
            E(f"    v_addc_co_u32 v17, vcc, 0, v17, vcc")
            E(f"    v_add_co_u32 v22, vcc, {32*56 if i*32*56 >= 4096 else (i+1)*32*56}, v22")
            E("    s_nop 1")
            E(f"    v_addc_co_u32 v23, vcc, 0, v23, vcc")
    E(f"    v_cmp_eq_u32 vcc, 3, v18")
    E("    s_waitcnt vmcnt(0)")
    for i in range(14):
        E(f"    v_cndmask_b32 v{WST0+4*i+2}, v{WST0+4*i+2}, v{26+i}, vcc")
        E(f"    v_cndmask_b32 v{WST0+4*i+3}, v{WST0+4*i+3}, 0, vcc")
    gemm3(2, [0, 1], 4, ACC0, AB0, XF0, WST0, XB0, V_LDSW, V_LDSR, V_LDSR1, V_XW, V_XR, 24576, 16384)
    srd(16, 32, 33, SZ_KA, WS_KA)
    srd(44, 32, 33, SZ_KA, WS_VT)
    srd(48, 32, 33, SZ_GATE, WS_GATE)
    E(f"    v_lshrrev_b32 v{V_T}, 5, v{V_POS}")
    E(f"    v_lshlrev_b32 v{V_T2}, 11, v{V_T}")
    E(f"    v_and_b32 v{V_T}, 31, v{V_POS}")
    E(f"    v_lshl_add_u32 v{V_T2}, v{V_T}, 4, v{V_T2}")
    E(f"    v_lshrrev_b32 v{V_T}, 5, v{V_POS}")
    E(f"    v_lshlrev_b32 v{V_T3}, 11, v{V_T}")
    E(f"    v_bfe_u32 v{V_T}, v{V_POS}, 4, 1")
    E(f"    v_lshl_add_u32 v{V_T3}, v{V_T}, 10, v{V_T3}")
    E(f"    v_bfe_u32 v{V_T}, v{V_POS}, 2, 1")
    E(f"    v_lshl_add_u32 v{V_T3}, v{V_T}, 9, v{V_T3}")
    E(f"    v_bfe_u32 v{V_T}, v{V_POS}, 3, 1")
    E(f"    v_lshl_add_u32 v{V_T3}, v{V_T}, 3, v{V_T3}")
    E(f"    v_and_b32 v{V_T}, 3, v{V_POS}")
    E(f"    v_lshl_add_u32 v{V_T3}, v{V_T}, 1, v{V_T3}")
    E(f"    v_mov_b32 v14, 0")
    E(f"    v_mov_b32 v15, 0")
    E(f"    v_mov_b32 v11, 0x3f80")
    for nt in range(2):
        for q in range(4):
            a = ACC0 + nt * 16 + q * 4
            for half in range(2):
                n4 = nt * 8 + q * 2 + half
                if n4 == 7:
                    continue
                E(f"    s_mov_b32 exec_lo, {0 if half else -1}")
                E(f"    s_mov_b32 exec_hi, {-1 if half else 0}")
                if n4 < 7:
                    d = n4 * 4
                    off = (d // 16) * 1024 + ((d % 16) // 8) * 512 + (d % 8) * 2
                    E(f"    v_cvt_pk_bf16_f32 v12, v{a}, v{a+1}")
                    E(f"    v_cvt_pk_bf16_f32 v13, v{a+2}, v{a+3}")
                    E(f"    buffer_store_dwordx2 v[12:13], v{V_T2}, s[16:19], 0 offen offset:{off}")
                    if d == 24:
                        E(f"    buffer_store_dwordx2 v[14:15], v{V_T2}, s[16:19], 0 offen offset:{off+8}")
                    E("    s_nop 0")
                elif n4 < 15:
                    dv = (n4 - 8) * 4
                    E(f"    v_cvt_pk_bf16_f32 v12, v{a}, v{a+1}")
                    E(f"    v_cvt_pk_bf16_f32 v13, v{a+2}, v{a+3}")
                    E(f"    buffer_store_short v12, v{V_T3}, s[44:47], 0 offen offset:{dv*16}")
                    E(f"    buffer_store_short_d16_hi v12, v{V_T3}, s[44:47], 0 offen offset:{(dv+1)*16}")
                    E(f"    buffer_store_short v13, v{V_T3}, s[44:47], 0 offen offset:{(dv+2)*16}")
                    E(f"    buffer_store_short_d16_hi v13, v{V_T3}, s[44:47], 0 offen offset:{(dv+3)*16}")
                    if dv == 24:
                        E(f"    buffer_store_short v11, v{V_T3}, s[44:47], 0 offen offset:{28*16}")
                        E(f"    buffer_store_short v14, v{V_T3}, s[44:47], 0 offen offset:{29*16}")
                        E(f"    buffer_store_short v14, v{V_T3}, s[44:47], 0 offen offset:{30*16}")
                        E(f"    buffer_store_short v14, v{V_T3}, s[44:47], 0 offen offset:{31*16}")
                    E("    s_nop 0")
                else:
                    E(f"    v_lshlrev_b32 v12, 2, v{V_POS}")
                    E(f"    buffer_store_dword v{a}, v12, s[48:51], 0 offen")
    E("    s_mov_b64 exec, -1")
    E(f"{lend}:")
    E("    s_endpgm")
    kernel_desc(name, 248)

def gen_k3():
    name = "k3_out_kernel"
    E(".text")
    E(".p2align 8")
    E(f".globl {name}")
    E(f".type {name},@function")
    E(f"{name}:")
    lend = L("k3end")
    E("    s_cmp_ge_u32 s2, 224")
    E(f"    s_cbranch_scc1 {lend}")
    stamp(0)
    E("    s_load_dwordx2 s[20:21], s[0:1], 88")
    E("    s_load_dwordx2 s[22:23], s[0:1], 32")
    E("    s_load_dwordx2 s[24:25], s[0:1], 56")
    E("    s_load_dwordx2 s[26:27], s[0:1], 72")
    E(f"    s_mov_b32 s3, {(1<<32)//7 + 1}")
    E("    s_mul_hi_u32 s4, s2, s3")
    E("    s_mul_i32 s5, s4, 7")
    E("    s_sub_u32 s5, s2, s5")
    V_LANE, V_LDSW, V_LDSR, V_T, V_XOFF, V_WOFF, V_POS, V_HALF = 1, 2, 3, 4, 5, 6, 7, 8
    V_T2, V_T3, V_LDSR1 = 9, 10, 11
    ACC0, AB0, WST0, XB0 = 16, 48, 64, 120
    XF0, V_XW, V_XR, V_ROW, V_XG = 232, 240, [241, 242, 243, 244], 245, 246
    gemm_lane_setup(V_LANE, V_LDSW, V_LDSR, V_LDSR1, V_T, V_T2)
    E(f"    v_lshrrev_b32 v{V_T}, 8, v0")
    E("    s_nop 0")
    E(f"    v_readfirstlane_b32 s34, v{V_T}")
    E(f"    v_bfe_u32 v{V_T}, v0, 7, 1")
    E(f"    v_lshlrev_b32 v{V_POS}, 5, v{V_T}")
    E(f"    v_and_b32 v{V_T}, 31, v0")
    E(f"    v_add_u32 v{V_POS}, v{V_POS}, v{V_T}")
    E("    s_lshl_b32 s6, s4, 6")
    E(f"    v_add_u32 v{V_POS}, s6, v{V_POS}")
    E(f"    v_bfe_u32 v{V_HALF}, v0, 5, 1")
    E(f"    s_movk_i32 s7, 1792")
    E(f"    v_mul_lo_u32 v{V_XOFF}, v{V_POS}, s7")
    E(f"    v_lshl_add_u32 v{V_XOFF}, v{V_HALF}, 4, v{V_XOFF}")
    E("    s_mul_i32 s35, s34, 896")
    E(f"    v_add_u32 v{V_XOFF}, s35, v{V_XOFF}")
    E(f"    v_bfe_u32 v{V_T}, v0, 6, 1")
    E(f"    v_cmp_eq_u32 vcc, 1, v{V_T}")
    E("    s_mul_i32 s35, s34, 32768")
    E(f"    v_cndmask_b32 v{V_LDSR}, v{V_LDSR}, v{V_LDSR1}, vcc")
    E(f"    v_add_u32 v{V_LDSR}, s35, v{V_LDSR}")
    E(f"    v_add_u32 v{V_LDSW}, s35, v{V_LDSW}")
    E("    s_waitcnt lgkmcnt(0)")
    srd(8, 20, 21, SZ_OAB, WS_OAB)
    E(f"    v_bfe_u32 v{V_T}, v0, 7, 1")
    E(f"    v_lshlrev_b32 v{V_ROW}, 5, v{V_T}")
    E(f"    v_and_b32 v{V_T}, 31, v0")
    E(f"    v_add_u32 v{V_ROW}, v{V_ROW}, v{V_T}")
    x_lane_setup(V_XW, V_XR, V_ROW, V_T, V_T2, V_HALF)
    E(f"    v_add_u32 v{V_XW}, s35, v{V_XW}")
    for ks in range(4):
        E(f"    v_add_u32 v{V_XR[ks]}, s35, v{V_XR[ks]}")
    E(f"    v_bfe_u32 v{V_T}, v0, 3, 5")
    E(f"    v_add_u32 v{V_T}, s6, v{V_T}")
    E(f"    s_movk_i32 s7, 1792")
    E(f"    v_mul_lo_u32 v{V_XG}, v{V_T}, s7")
    E(f"    v_and_b32 v{V_T}, 7, v0")
    E(f"    v_lshl_add_u32 v{V_XG}, v{V_T}, 4, v{V_XG}")
    E("    s_mul_i32 s36, s34, 896")
    E(f"    v_add_u32 v{V_XG}, s36, v{V_XG}")
    for c in range(7):
        for j in range(2):
            r = XB0 + (c * 2 + j) * 4
            E(f"    s_mov_b32 s40, {j*32*1792}")
            E(f"    buffer_load_dwordx4 v[{r}:{r+3}], v{V_XG}, s[8:11], s40 offen offset:{c*128}")
    E("    s_lshl_b32 s6, s5, 7")
    E("    s_cmp_eq_u32 s34, 0")
    E("    s_cselect_b32 s12, s22, s24")
    E("    s_cselect_b32 s13, s23, s25")
    E(f"    s_add_u32 s12, s12, s6")
    E(f"    s_addc_u32 s13, s13, 0")
    E(f"    s_sub_u32 s14, {448*448*2}, s6")
    E(f"    s_mov_b32 s15, 0x00020000")
    stride = 896
    E(f"    v_bfe_u32 v{V_T}, v0, 3, 5")
    E(f"    s_movk_i32 s7, {stride}")
    E(f"    v_mul_lo_u32 v{V_WOFF}, v{V_T}, s7")
    E(f"    v_and_b32 v{V_T}, 7, v0")
    E(f"    v_lshl_add_u32 v{V_WOFF}, v{V_T}, 4, v{V_WOFF}")
    for i in range(14):
        E(f"    s_mov_b32 s41, {i*32*stride}")
        E(f"    buffer_load_dwordx4 v[{WST0+4*i}:{WST0+4*i+3}], v{V_WOFF}, s[12:15], s41 offen")
    gemm3(1, [0], 2, ACC0, AB0, XF0, WST0, XB0, V_LDSW, V_LDSR, V_LDSR1, V_XW, V_XR, 16384, 8192)
    stamp(3)
    E("    s_barrier")
    E(f"    v_bfe_u32 v{V_T}, v0, 6, 2")
    E(f"    v_lshlrev_b32 v{V_T}, 12, v{V_T}")
    E(f"    v_lshl_add_u32 v{V_T}, v{V_LANE}, 4, v{V_T}")
    lup = L("k3up")
    E("    s_cmp_eq_u32 s34, 1")
    E(f"    s_cbranch_scc1 {lup}")
    E("    s_barrier")
    for i in range(4):
        E(f"    ds_read_b128 v[{WST0+4*i}:{WST0+4*i+3}], v{V_T} offset:{i*1024}")
    E("    s_waitcnt lgkmcnt(0)")
    for i in range(16):
        E(f"    v_add_f32 v{ACC0+i}, v{ACC0+i}, v{WST0+i}")
    srd(16, 26, 27, S * D * 2)
    E(f"    s_movk_i32 s7, 896")
    E(f"    v_mul_lo_u32 v{V_T3}, v{V_POS}, s7")
    E(f"    v_lshl_add_u32 v{V_T3}, v{V_HALF}, 3, v{V_T3}")
    E(f"    v_add_u32 v{V_T3}, s6, v{V_T3}")
    E(f"    v_bfe_u32 v{V_T}, v0, 6, 1")
    E(f"    v_lshl_add_u32 v{V_T3}, v{V_T}, 6, v{V_T3}")
    for q in range(4):
        a = ACC0 + q * 4
        E(f"    v_cvt_pk_bf16_f32 v12, v{a}, v{a+1}")
        E(f"    v_cvt_pk_bf16_f32 v13, v{a+2}, v{a+3}")
        E(f"    buffer_store_dwordx2 v[12:13], v{V_T3}, s[16:19], 0 offen offset:{q*16}")
        E("    s_nop 0")
    stamp(4)
    stamp_flush(5)
    E(f"    s_branch {lend}")
    E(f"{lup}:")
    for i in range(4):
        E(f"    ds_write_b128 v{V_T}, v[{ACC0+4*i}:{ACC0+4*i+3}] offset:{i*1024}")
    E("    s_waitcnt lgkmcnt(0)")
    E("    s_barrier")
    E(f"{lend}:")
    E("    s_endpgm")
    kernel_desc(name, 248)

import math
CSC = (28 ** -0.5) * math.log2(math.e)
import struct
def f32bits(x):
    return struct.unpack("<I", struct.pack("<f", x))[0]

def gen_k2():
    name = "k2_attn_kernel"
    E(".text")
    E(".p2align 8")
    E(f".globl {name}")
    E(f".type {name},@function")
    E(f"{name}:")
    lend = L("k2end")
    E("    s_cmp_ge_u32 s2, 256")
    E(f"    s_cbranch_scc1 {lend}")
    E("    s_load_dwordx2 s[20:21], s[0:1], 88")
    E("    s_lshr_b32 s4, s2, 4")
    E("    s_and_b32 s5, s2, 15")
    V_LANE, V_T, V_T2, V_GOFF, V_LW, V_LR, V_POS, V_HALF, V_M = 1, 2, 3, 4, 5, 6, 7, 8, 9
    V_A, V_B, V_TM = 10, 11, 12
    Q0, SREG, PREG, OREG, KF, VF, STG = 16, 32, 48, 64, 80, 88, 96
    E(f"    v_and_b32 v{V_LANE}, 63, v0")
    E(f"    v_lshrrev_b32 v{V_T}, 6, v0")
    E("    s_nop 0")
    E(f"    v_readfirstlane_b32 s6, v{V_T}")
    E("    s_and_b32 s7, s6, 3")
    E("    s_lshr_b32 s34, s6, 2")
    E(f"    v_bfe_u32 v{V_HALF}, v0, 5, 1")
    E("    s_lshl_b32 s35, s5, 7")
    E("    s_lshl_b32 s36, s7, 5")
    E("    s_add_u32 s35, s35, s36")
    E(f"    v_and_b32 v{V_T}, 31, v0")
    E(f"    v_add_u32 v{V_POS}, s35, v{V_T}")
    E("    s_waitcnt lgkmcnt(0)")
    srd(8, 20, 21, SZ_QA, WS_QA)
    srd(12, 20, 21, 2 * SZ_KA, WS_KA)
    E("    s_lshl_b32 s36, s4, 17")
    E(f"    v_lshlrev_b32 v{V_T}, 6, v{V_POS}")
    E(f"    v_lshl_add_u32 v{V_T}, v{V_HALF}, 4, v{V_T}")
    E(f"    v_add_u32 v{V_T}, s36, v{V_T}")
    E(f"    buffer_load_dwordx4 v[{Q0}:{Q0+3}], v{V_T}, s[8:11], 0 offen")
    E(f"    buffer_load_dwordx4 v[{Q0+4}:{Q0+7}], v{V_T}, s[8:11], 0 offen offset:32")
    E(f"    v_lshrrev_b32 v{V_T}, 8, v0")
    E(f"    v_lshlrev_b32 v{V_GOFF}, 16, v{V_T}")
    E(f"    v_and_b32 v{V_T2}, 255, v0")
    E(f"    v_lshl_add_u32 v{V_GOFF}, v{V_T2}, 4, v{V_GOFF}")
    E(f"    v_lshlrev_b32 v{V_LW}, 12, v{V_T}")
    E(f"    v_lshl_add_u32 v{V_LW}, v{V_T2}, 4, v{V_LW}")
    E(f"    v_lshlrev_b32 v{V_LR}, 4, v{V_LANE}")
    E("    s_lshl_b32 s36, s34, 12")
    E(f"    v_add_u32 v{V_LR}, s36, v{V_LR}")
    for i in range(16):
        E(f"    v_mov_b32 v{OREG+i}, 0")
    E(f"    v_mov_b32 v{V_M}, 0xf149f2ca")
    QB = 24
    def KBr(w): return 144 + 8 * w
    def VBr(w): return 208 + 8 * w if w < 6 else 80 + 8 * (w - 6)
    lnob = L("k2nob")
    E("    s_cmp_lt_u32 s6, 4")
    E(f"    s_cbranch_scc1 {lnob}")
    srd(84, 20, 21, SZ_QKVB, WS_QKVB)
    E(f"    v_lshrrev_b32 v{V_T}, 1, v{V_LANE}")
    E(f"    v_add_u32 v{V_A}, s35, v{V_T}")
    E(f"    v_and_b32 v{V_T2}, 1, v{V_LANE}")
    E("    s_movk_i32 s36, 2688")
    E(f"    v_mul_lo_u32 v{V_B}, v{V_A}, s36")
    E(f"    v_mul_u32_u24 v{V_T}, 28, v{V_T2}")
    E(f"    v_add_u32 v{V_B}, v{V_B}, v{V_T}")
    E("    s_mul_i32 s36, s4, 56")
    E(f"    v_add_u32 v{V_B}, s36, v{V_B}")
    E(f"    buffer_load_dwordx4 v[{QB}:{QB+3}], v{V_B}, s[84:87], 0 offen")
    E(f"    buffer_load_dwordx3 v[{QB+4}:{QB+6}], v{V_B}, s[84:87], 0 offen offset:16")
    E(f"    v_and_b32 v{V_T2}, 255, v0")
    E("    s_lshl_b32 s36, s5, 7")
    E("    s_sub_u32 s36, s36, 14")
    E("    s_mul_i32 s43, s4, 56")
    E("    s_add_u32 s43, s43, 896")
    for i in range(16):
        E(f"    v_add_u32 v{V_T}, {256*i}, v{V_T2}")
        E(f"    v_mul_u32_u24 v{V_A}, 2341, v{V_T}")
        E(f"    v_lshrrev_b32 v{V_A}, 16, v{V_A}")
        E(f"    v_mul_u32_u24 v{V_B}, 28, v{V_A}")
        E(f"    v_sub_u32 v{V_B}, v{V_T}, v{V_B}")
        E(f"    v_lshlrev_b32 v{144+i}, 2, v{V_T}")
        E(f"    v_add_u32 v{V_A}, s36, v{V_A}")
        E(f"    v_cmp_gt_u32 vcc, 14, v{V_B}")
        E(f"    v_lshlrev_b32 v{V_B}, 2, v{V_B}")
        E(f"    v_add_u32 v{V_TM}, {896-56}, v{V_B}")
        E(f"    v_cndmask_b32 v{V_B}, v{V_TM}, v{V_B}, vcc")
        E("    s_movk_i32 s44, 2688")
        E(f"    v_mul_lo_u32 v{V_TM}, v{V_A}, s44")
        E(f"    v_add3_u32 v{V_B}, v{V_B}, v{V_TM}, s43")
        E(f"    v_cmp_gt_u32 vcc, 2048, v{V_A}")
        E(f"    v_mov_b32 v{V_TM}, 0x7ffffff0")
        if i == 15:
            E("    s_movk_i32 s45, 3976")
            E(f"    v_cmp_gt_u32 s[46:47], s45, v{V_T}")
            E("    s_nop 1")
            E("    s_and_b64 vcc, vcc, s[46:47]")
        E("    s_nop 1")
        E(f"    v_cndmask_b32 v{V_B}, v{V_TM}, v{V_B}, vcc")
        E(f"    buffer_load_dword v{160+i}, v{V_B}, s[84:87], 0 offen")
    E("    s_waitcnt vmcnt(0)")
    for i in range(16):
        if i == 15:
            E(f"    v_cmp_gt_u32 vcc, {3976*4}, v{144+i}")
            E("    s_and_saveexec_b64 s[46:47], vcc")
        E(f"    ds_write_b32 v{144+i}, v{160+i} offset:32768")
    E("    s_mov_b64 exec, -1")
    E(f"{lnob}:")
    E(f"    s_mov_b32 s37, {f32bits(CSC)}")
    E(f"    s_mov_b32 s38, 0x41000000")
    E("    s_mov_b32 s39, 0x20000")
    def gload(sidx_sgpr):
        E(f"    buffer_load_dwordx4 v[{STG}:{STG+3}], v{V_GOFF}, s[12:15], s{sidx_sgpr} offen")
        E(f"    s_add_u32 s43, s{sidx_sgpr}, s39")
        E(f"    buffer_load_dwordx4 v[{STG+4}:{STG+7}], v{V_GOFF}, s[12:15], s43 offen")
    def lwrite(buf):
        E(f"    ds_write_b128 v{V_LW}, v[{STG}:{STG+3}] offset:{buf*16384}")
        E(f"    ds_write_b128 v{V_LW}, v[{STG+4}:{STG+7}] offset:{buf*16384+8192}")
    E("    s_mov_b32 s42, 0")
    gload(42)
    E("    s_waitcnt vmcnt(0)")
    lwrite(0)
    E("    s_waitcnt lgkmcnt(0)")
    E("    s_barrier")
    E("    s_mov_b32 s41, 0")
    lloop = L("k2loop")
    E(f"{lloop}:")
    S1, KF2, VF2, P1 = 104, 120, 128, 136
    def stage_compute(buf):
        o = buf * 16384
        for tt, (kf, vf) in enumerate([(KF, VF), (KF2, VF2)]):
            E(f"    ds_read_b128 v[{kf}:{kf+3}], v{V_LR} offset:{o+tt*2048}")
            E(f"    ds_read_b128 v[{kf+4}:{kf+7}], v{V_LR} offset:{o+tt*2048+1024}")
        for tt, (kf, vf) in enumerate([(KF, VF), (KF2, VF2)]):
            E(f"    ds_read_b128 v[{vf}:{vf+3}], v{V_LR} offset:{o+tt*2048+8192}")
            E(f"    ds_read_b128 v[{vf+4}:{vf+7}], v{V_LR} offset:{o+tt*2048+8192+1024}")
        E("    s_waitcnt lgkmcnt(6)")
        E(f"    v_mfma_f32_32x32x16_bf16 v[{SREG}:{SREG+15}], v[{KF}:{KF+3}], v[{Q0}:{Q0+3}], 0")
        E(f"    v_mfma_f32_32x32x16_bf16 v[{SREG}:{SREG+15}], v[{KF+4}:{KF+7}], v[{Q0+4}:{Q0+7}], v[{SREG}:{SREG+15}]")
        E("    s_waitcnt lgkmcnt(4)")
        E(f"    v_mfma_f32_32x32x16_bf16 v[{S1}:{S1+15}], v[{KF2}:{KF2+3}], v[{Q0}:{Q0+3}], 0")
        E(f"    v_mfma_f32_32x32x16_bf16 v[{S1}:{S1+15}], v[{KF2+4}:{KF2+7}], v[{Q0+4}:{Q0+7}], v[{S1}:{S1+15}]")
        E("    s_nop 9")
        E(f"    v_max3_f32 v{V_A}, v{SREG}, v{SREG+1}, v{SREG+2}")
        for i in range(3, 15, 2):
            E(f"    v_max3_f32 v{V_A}, v{V_A}, v{SREG+i}, v{SREG+i+1}")
        E(f"    v_max3_f32 v{V_A}, v{V_A}, v{SREG+15}, v{S1}")
        for i in range(1, 15, 2):
            E(f"    v_max3_f32 v{V_A}, v{V_A}, v{S1+i}, v{S1+i+1}")
        E(f"    v_max_f32 v{V_A}, v{V_A}, v{S1+15}")
        E(f"    v_mov_b32 v{V_B}, v{V_A}")
        E("    s_nop 1")
        E(f"    v_permlane32_swap_b32 v{V_A}, v{V_B}")
        E(f"    v_max_f32 v{V_A}, v{V_A}, v{V_B}")
        E(f"    v_mul_f32 v{V_TM}, s37, v{V_A}")
        E(f"    v_sub_f32 v{V_A}, v{V_TM}, v{V_M}")
        E(f"    v_cmp_lt_f32 vcc, s38, v{V_A}")
        lsk = L("k2sk")
        E(f"    s_cbranch_vccz {lsk}")
        E(f"    v_max_f32 v{V_TM}, v{V_TM}, v{V_M}")
        E(f"    v_sub_f32 v{V_A}, v{V_M}, v{V_TM}")
        E(f"    v_exp_f32 v{V_A}, v{V_A}")
        E(f"    v_mov_b32 v{V_M}, v{V_TM}")
        for i in range(16):
            E(f"    v_mul_f32 v{OREG+i}, v{OREG+i}, v{V_A}")
        E(f"{lsk}:")
        for (sr, pr, vf) in [(SREG, PREG, VF), (S1, P1, VF2)]:
            for i in range(16):
                E(f"    v_fma_f32 v{sr+i}, v{sr+i}, s37, -v{V_M}")
                E(f"    v_exp_f32 v{sr+i}, v{sr+i}")
            E("    s_nop 0")
            for i in range(8):
                E(f"    v_cvt_pk_bf16_f32 v{pr+i}, v{sr+2*i}, v{sr+2*i+1}")
            E("    s_waitcnt lgkmcnt(0)")
            E("    s_nop 1")
            E(f"    v_mfma_f32_32x32x16_bf16 v[{OREG}:{OREG+15}], v[{vf}:{vf+3}], v[{pr}:{pr+3}], v[{OREG}:{OREG+15}]")
            E(f"    v_mfma_f32_32x32x16_bf16 v[{OREG}:{OREG+15}], v[{vf+4}:{vf+7}], v[{pr+4}:{pr+7}], v[{OREG}:{OREG+15}]")
    for buf in range(2):
        lnl = L("k2nl")
        E("    s_add_u32 s42, s41, 1")
        E("    s_cmp_ge_u32 s42, 16")
        E(f"    s_cbranch_scc1 {lnl}")
        E("    s_lshl_b32 s42, s42, 12")
        gload(42)
        E(f"{lnl}:")
        stage_compute(buf)
        E("    s_waitcnt vmcnt(0)")
        lwrite(1 - buf)
        E("    s_waitcnt lgkmcnt(0)")
        E("    s_barrier")
        E("    s_add_u32 s41, s41, 1")
    E("    s_cmp_lt_u32 s41, 16")
    E(f"    s_cbranch_scc1 {lloop}")
    E("    s_nop 15")
    lupper = L("k2up")
    E("    s_cmp_ge_u32 s6, 4")
    E(f"    s_cbranch_scc1 {lupper}")
    E("    s_barrier")
    E(f"    v_lshlrev_b32 v{V_T}, 4, v{V_LANE}")
    E("    s_mul_i32 s36, s7, 5120")
    E(f"    v_add_u32 v{V_T}, s36, v{V_T}")
    for i in range(4):
        E(f"    ds_read_b128 v[{SREG+4*i}:{SREG+4*i+3}], v{V_T} offset:{i*1024}")
    E(f"    v_lshlrev_b32 v{V_T2}, 2, v{V_LANE}")
    E(f"    v_add_u32 v{V_T2}, s36, v{V_T2}")
    E(f"    ds_read_b32 v{V_A}, v{V_T2} offset:4096")
    srd(16, 20, 21, SZ_GATE, WS_GATE)
    E(f"    v_lshlrev_b32 v{V_T}, 2, v{V_POS}")
    E(f"    buffer_load_dword v{V_B}, v{V_T}, s[16:19], 0 offen")
    E("    s_waitcnt lgkmcnt(0)")
    E(f"    v_max_f32 v{V_TM}, v{V_M}, v{V_A}")
    E(f"    v_sub_f32 v{V_M}, v{V_M}, v{V_TM}")
    E(f"    v_sub_f32 v{V_A}, v{V_A}, v{V_TM}")
    E(f"    v_exp_f32 v{V_M}, v{V_M}")
    E(f"    v_exp_f32 v{V_A}, v{V_A}")
    E("    s_nop 0")
    for i in range(16):
        E(f"    v_mul_f32 v{OREG+i}, v{OREG+i}, v{V_M}")
        E(f"    v_fmac_f32 v{OREG+i}, v{SREG+i}, v{V_A}")
    E(f"    v_mov_b32 v{V_T}, v{OREG+12}")
    E(f"    v_mov_b32 v{V_T2}, v{OREG+12}")
    E("    s_nop 1")
    E(f"    v_permlane32_swap_b32 v{V_T}, v{V_T2}")
    E(f"    v_rcp_f32 v{V_T2}, v{V_T2}")
    E("    s_waitcnt vmcnt(0)")
    E(f"    v_mul_f32 v{V_B}, 0xbfb8aa3b, v{V_B}")
    E(f"    v_exp_f32 v{V_B}, v{V_B}")
    E("    s_nop 0")
    E(f"    v_add_f32 v{V_B}, 1.0, v{V_B}")
    E(f"    v_rcp_f32 v{V_B}, v{V_B}")
    E("    s_nop 0")
    E(f"    v_mul_f32 v{V_T2}, v{V_T2}, v{V_B}")
    srd(16, 20, 21, SZ_OAB, WS_OAB)
    E("    s_movk_i32 s36, 1792")
    E(f"    v_mul_lo_u32 v{V_T}, v{V_POS}, s36")
    E("    s_mul_i32 s36, s4, 56")
    E(f"    v_add_u32 v{V_T}, s36, v{V_T}")
    E(f"    v_lshl_add_u32 v{V_T}, v{V_HALF}, 3, v{V_T}")
    for q in range(4):
        for i in range(4):
            E(f"    v_mul_f32 v{OREG+4*q+i}, v{OREG+4*q+i}, v{V_T2}")
        E(f"    v_cvt_pk_bf16_f32 v{PREG+2*q}, v{OREG+4*q}, v{OREG+4*q+1}")
        E(f"    v_cvt_pk_bf16_f32 v{PREG+2*q+1}, v{OREG+4*q+2}, v{OREG+4*q+3}")
        if q == 3:
            E("    s_mov_b32 exec_hi, 0")
        E(f"    buffer_store_dwordx2 v[{PREG+2*q}:{PREG+2*q+1}], v{V_T}, s[16:19], 0 offen offset:{q*16}")
    E("    s_mov_b64 exec, -1")
    E(f"    s_branch {lend}")
    E(f"{lupper}:")
    E(f"    v_lshlrev_b32 v{V_T}, 4, v{V_LANE}")
    E("    s_mul_i32 s36, s7, 5120")
    E(f"    v_add_u32 v{V_T}, s36, v{V_T}")
    for i in range(4):
        E(f"    ds_write_b128 v{V_T}, v[{OREG+4*i}:{OREG+4*i+3}] offset:{i*1024}")
    E(f"    v_lshlrev_b32 v{V_T2}, 2, v{V_LANE}")
    E(f"    v_add_u32 v{V_T2}, s36, v{V_T2}")
    E(f"    ds_write_b32 v{V_T2}, v{V_M} offset:4096")
    E("    s_waitcnt lgkmcnt(0)")
    E("    s_barrier")
    if os.environ.get("NOB"):
        E(f"    s_branch {lend}")
    E(f"    v_lshrrev_b32 v{V_T}, 1, v{V_LANE}")
    E(f"    v_add_u32 v{V_POS}, s35, v{V_T}")
    E("    s_lshl_b32 s36, s7, 5")
    E(f"    v_add_u32 v{V_T}, s36, v{V_T}")
    E(f"    v_mul_u32_u24 v{V_T}, 112, v{V_T}")
    E(f"    v_and_b32 v{V_T2}, 1, v{V_LANE}")
    E(f"    v_mul_u32_u24 v{V_T2}, 28, v{V_T2}")
    E(f"    v_add_u32 v{V_T}, v{V_T}, v{V_T2}")
    for w in range(8):
        o = 32768 + (14 - 2 * w) * 112
        for j in range(7):
            E(f"    ds_read_b32 v{KBr(w)+j}, v{V_T} offset:{o+4*j}")
            E(f"    ds_read_b32 v{VBr(w)+j}, v{V_T} offset:{o+56+4*j}")
        E("    s_waitcnt lgkmcnt(0)")
    srd(16, 20, 21, SZ_GATE, WS_GATE)
    E(f"    v_lshlrev_b32 v{V_T}, 2, v{V_POS}")
    E(f"    buffer_load_dword v{V_B}, v{V_T}, s[16:19], 0 offen")
    E("    s_waitcnt vmcnt(0)")
    LG = 32
    for w in range(8):
        E(f"    v_mov_b32 v{LG+w}, 0")
        for j in range(7):
            E(f"    v_dot2_f32_bf16 v{LG+w}, v{QB+j}, v{KBr(w)+j}, v{LG+w}")
    E("    s_nop 1")
    for w in range(8):
        E(f"    v_add_f32_dpp v{LG+8}, v{LG+w}, v{LG+w} quad_perm:[1,0,3,2] row_mask:0xf bank_mask:0xf")
        E(f"    v_mul_f32 v{LG+w}, s37, v{LG+8}")
        E(f"    v_cmp_le_u32 vcc, {2*w}, v{V_POS}")
        E(f"    v_mov_b32 v{V_A}, 0xf149f2ca")
        E("    s_nop 0")
        E(f"    v_cndmask_b32 v{LG+w}, v{V_A}, v{LG+w}, vcc")
    E(f"    v_max3_f32 v{V_A}, v{LG}, v{LG+1}, v{LG+2}")
    E(f"    v_max3_f32 v{V_A}, v{V_A}, v{LG+3}, v{LG+4}")
    E(f"    v_max3_f32 v{V_A}, v{V_A}, v{LG+5}, v{LG+6}")
    E(f"    v_max_f32 v{V_A}, v{V_A}, v{LG+7}")
    for w in range(8):
        E(f"    v_sub_f32 v{LG+w}, v{LG+w}, v{V_A}")
        E(f"    v_exp_f32 v{LG+w}, v{LG+w}")
    E("    s_nop 0")
    E(f"    v_add_f32 v{V_A}, v{LG}, v{LG+1}")
    for w in range(2, 8):
        E(f"    v_add_f32 v{V_A}, v{V_A}, v{LG+w}")
    E(f"    v_rcp_f32 v{V_A}, v{V_A}")
    E(f"    v_mul_f32 v{V_B}, 0x3fb8aa3b, v{V_B}")
    E(f"    v_exp_f32 v{V_B}, v{V_B}")
    E("    s_nop 0")
    E(f"    v_add_f32 v{V_B}, 1.0, v{V_B}")
    E(f"    v_rcp_f32 v{V_B}, v{V_B}")
    E("    s_nop 0")
    E(f"    v_mul_f32 v{V_A}, v{V_A}, v{V_B}")
    for w in range(8):
        E(f"    v_mul_f32 v{LG+w}, v{LG+w}, v{V_A}")
    AC = 104
    for j in range(14):
        E(f"    v_mov_b32 v{AC+j}, 0")
    for w in range(8):
        for j in range(7):
            E(f"    v_lshlrev_b32 v{V_T}, 16, v{VBr(w)+j}")
            E(f"    v_and_b32 v{V_T2}, 0xffff0000, v{VBr(w)+j}")
            E(f"    v_fmac_f32 v{AC+2*j}, v{V_T}, v{LG+w}")
            E(f"    v_fmac_f32 v{AC+2*j+1}, v{V_T2}, v{LG+w}")
    for j in range(7):
        E(f"    v_cvt_pk_bf16_f32 v{QB+j}, v{AC+2*j}, v{AC+2*j+1}")
    srd(16, 20, 21, SZ_OAB, WS_OAB)
    E("    s_movk_i32 s36, 1792")
    E(f"    v_mul_lo_u32 v{V_T}, v{V_POS}, s36")
    E(f"    v_and_b32 v{V_T2}, 1, v{V_LANE}")
    E(f"    v_mul_u32_u24 v{V_T2}, 28, v{V_T2}")
    E(f"    v_add_u32 v{V_T}, v{V_T}, v{V_T2}")
    E("    s_mul_i32 s36, s4, 56")
    E("    s_add_u32 s36, s36, 896")
    E(f"    v_add_u32 v{V_T}, s36, v{V_T}")
    E(f"    buffer_store_dwordx4 v[{QB}:{QB+3}], v{V_T}, s[16:19], 0 offen")
    E(f"    buffer_store_dwordx3 v[{QB+4}:{QB+6}], v{V_T}, s[16:19], 0 offen offset:16")
    E(f"{lend}:")
    E("    s_endpgm")
    kernel_desc(name, 256)

def main():
    hdr = open("cdna_kernels/" + NAME + ".s.ref").read().split("\n")
    for l in hdr:
        if l.startswith("; @launch"):
            break
        if l.startswith(";"):
            E(l)
    E("; @launch kernel=k1_proj_kernel grid=(464,1,1) block=(256,1,1) lds=49152")
    E("; @launch kernel=k2_attn_kernel grid=(256,1,1) block=(512,1,1) lds=49152")
    E("; @launch kernel=k3_out_kernel grid=(224,1,1) block=(512,1,1) lds=65536")
    E('.amdgcn_target "amdgcn-amd-amdhsa--gfx950"')
    E(".text")
    gen_k1()
    gen_k2()
    gen_k3()
    open(os.environ.get("OUTS", "cdna_kernels/" + NAME + ".s"), "w").write("\n".join(out) + "\n")

main()
```

```python
import sys

NAME = "gated_mix__grouped_kv_mqa__sliding_local_dilated__prompt"
S = 2048
D = 448
WS_QA = 0x000000
WS_KA = 0x200000
WS_VT = 0x220000
WS_GATE = 0x240000
WS_QKVB = 0x300000
WS_OAB = 0x900000
SZ_QA = 16 * 2048 * 32 * 2
SZ_KA = 2048 * 32 * 2
SZ_GATE = 2048 * 4
SZ_QKVB = 2048 * 1344 * 2
SZ_OAB = 2048 * 896 * 2

out = []
import math as _m, struct as _st
QSC = _st.unpack('<I', _st.pack('<f', (28 ** -0.5) * _m.log2(_m.e)))[0]
def E(s=""):
    out.append(s)

_lbl = [0]
def L(prefix="L"):
    _lbl[0] += 1
    return f"{prefix}_{_lbl[0]}"

def srd(dst, base_lo, base_hi, nbytes, add=0):
    if add:
        E(f"    s_add_u32 s{dst}, s{base_lo}, {add}")
        E(f"    s_addc_u32 s{dst+1}, s{base_hi}, 0")
    else:
        E(f"    s_mov_b32 s{dst}, s{base_lo}")
        E(f"    s_mov_b32 s{dst+1}, s{base_hi}")
    E(f"    s_mov_b32 s{dst+2}, {nbytes}")
    E(f"    s_mov_b32 s{dst+3}, 0x00020000")

import os
STAMP = os.environ.get("STAMP")
_stamps = []
def stamp(idx):
    if STAMP:
        E(f"    s_memtime s[{60+2*idx}:{61+2*idx}]")
def stamp_flush(n):
    if STAMP:
        lsk = L("st")
        E("    s_waitcnt lgkmcnt(0)")
        E("    s_cmp_lg_u32 s2, 100")
        E(f"    s_cbranch_scc1 {lsk}")
        E("    v_cmp_eq_u32 vcc, 0, v0")
        E("    s_and_saveexec_b64 s[90:91], vcc")
        E(f"    s_cbranch_execz {lsk}")
        E("    s_load_dwordx2 s[92:93], s[0:1], 80")
        E("    s_waitcnt lgkmcnt(0)")
        for i in range(n):
            E(f"    s_sub_u32 s94, s{60+2*i}, s60")
            E(f"    v_mov_b32 v1, s94")
            E(f"    v_mov_b32 v2, {4*i}")
            E(f"    global_store_dword v2, v1, s[92:93]")
        E(f"{lsk}:")

def kernel_desc(name, vgpr, sgpr=102):
    E(".section .rodata,\"a\"")
    E(".p2align 6")
    E(f".amdhsa_kernel {name}")
    E(f"  .amdhsa_next_free_vgpr {vgpr}")
    E(f"  .amdhsa_next_free_sgpr {sgpr}")
    E(f"  .amdhsa_accum_offset {((vgpr+3)//4)*4}")
    E("  .amdhsa_group_segment_fixed_size 0")
    E("  .amdhsa_kernarg_size 96")
    E("  .amdhsa_user_sgpr_count 2")
    E("  .amdhsa_user_sgpr_kernarg_segment_ptr 1")
    E("  .amdhsa_system_sgpr_workgroup_id_x 1")
    E(".end_amdhsa_kernel")

LROW = 128
LW_BYTES = 448 * LROW

XROWS_MAX = 128
def gemm3(NW, nts, nxl, acc0, ab0, xf0, wst0, xst0, v_ldsw, v_ldsr0, v_ldsr1, v_xw, v_xr, bufbytes, woff_in_buf, inorder=True):
    total = 14 + 7 * nxl
    for i in range(NW * 16):
        E(f"    v_mov_b32 v{acc0+i}, 0")
    def stage(c):
        base = (c % 2) * bufbytes
        E(f"    s_waitcnt vmcnt({(6-c)*(nxl+2) if inorder else 0})")
        for j in range(2):
            i = 2 * c + j
            E(f"    ds_write_b128 v{v_ldsw}, v[{wst0+4*i}:{wst0+4*i+3}] offset:{base + woff_in_buf + j*32*LROW}")
        for j in range(nxl):
            r = xst0 + (c * nxl + j) * 4
            E(f"    ds_write_b128 v{v_xw}, v[{r}:{r+3}] offset:{base + j*32*128}")
    def rd(c, ks):
        base = (c % 2) * bufbytes
        p = (c * 4 + ks) % 2
        b = ab0 + p * NW * 4
        for ii, nt in enumerate(nts):
            aa = b + ii * 4
            vr = v_ldsr0 if nt == 0 else v_ldsr1
            o = base + woff_in_buf + ks * 16 * LROW
            E(f"    ds_read_b64_tr_b16 v[{aa}:{aa+1}], v{vr} offset:{o}")
            E(f"    ds_read_b64_tr_b16 v[{aa+2}:{aa+3}], v{vr} offset:{o + 4*LROW}")
        x = xf0 + p * 4
        E(f"    ds_read_b128 v[{x}:{x+3}], v{v_xr[ks]} offset:{base}")
    stage(0)
    E("    s_waitcnt lgkmcnt(0)")
    E("    s_barrier")
    for c in range(7):
        rd(c, 0)
        if c < 6:
            stage(c + 1)
        for ks in range(4):
            if ks < 3:
                rd(c, ks + 1)
                E(f"    s_waitcnt lgkmcnt({2*NW+1})")
            else:
                E("    s_waitcnt lgkmcnt(0)")
            p = (c * 4 + ks) % 2
            b = ab0 + p * NW * 4
            x = xf0 + p * 4
            for ii in range(NW):
                aa = b + ii * 4
                acc = acc0 + ii * 16
                E(f"    v_mfma_f32_32x32x16_bf16 v[{acc}:{acc+15}], v[{aa}:{aa+3}], v[{x}:{x+3}], v[{acc}:{acc+15}]")
        if c < 6:
            E("    s_barrier")
    E("    s_nop 15")
    E("    s_nop 3")

def x_lane_setup(v_xw, v_xr, v_row, v_t, v_t2, v_half):
    E(f"    v_bfe_u32 v{v_t}, v0, 3, 5")
    E(f"    v_and_b32 v{v_t2}, 7, v{v_t}")
    E(f"    v_lshlrev_b32 v{v_xw}, 7, v{v_t}")
    E(f"    v_and_b32 v{v_t}, 7, v0")
    E(f"    v_xor_b32 v{v_t}, v{v_t}, v{v_t2}")
    E(f"    v_lshl_add_u32 v{v_xw}, v{v_t}, 4, v{v_xw}")
    for ks in range(4):
        E(f"    v_add_u32 v{v_t}, {ks*2}, v{v_half}")
        E(f"    v_and_b32 v{v_t2}, 7, v{v_row}")
        E(f"    v_xor_b32 v{v_t}, v{v_t}, v{v_t2}")
        E(f"    v_lshlrev_b32 v{v_xr[ks]}, 7, v{v_row}")
        E(f"    v_lshl_add_u32 v{v_xr[ks]}, v{v_t}, 4, v{v_xr[ks]}")

def gemm_lane_setup(v_lane, v_ldsw, v_ldsr0, v_ldsr1, v_t, v_t2):
    E(f"    v_and_b32 v{v_lane}, 63, v0")
    E(f"    v_bfe_u32 v{v_t}, v0, 3, 5")
    E(f"    v_lshlrev_b32 v{v_ldsw}, 7, v{v_t}")
    E(f"    v_bfe_u32 v{v_t}, v0, 4, 1")
    E(f"    v_lshlrev_b32 v{v_t}, 2, v{v_t}")
    E(f"    v_and_b32 v{v_t2}, 7, v0")
    E(f"    v_xor_b32 v{v_t}, v{v_t}, v{v_t2}")
    E(f"    v_lshl_add_u32 v{v_ldsw}, v{v_t}, 4, v{v_ldsw}")
    E(f"    v_lshrrev_b32 v{v_t}, 5, v{v_lane}")
    E(f"    v_lshlrev_b32 v{v_ldsr0}, 3, v{v_t}")
    E(f"    v_bfe_u32 v{v_t}, v{v_lane}, 2, 2")
    E(f"    v_add_u32 v{v_ldsr0}, v{v_ldsr0}, v{v_t}")
    E(f"    v_lshlrev_b32 v{v_ldsr0}, 7, v{v_ldsr0}")
    E(f"    v_bfe_u32 v{v_t}, v{v_lane}, 4, 1")
    E(f"    v_lshl_add_u32 v{v_ldsr0}, v{v_t}, 5, v{v_ldsr0}")
    E(f"    v_and_b32 v{v_t}, 3, v{v_lane}")
    E(f"    v_lshl_add_u32 v{v_ldsr0}, v{v_t}, 3, v{v_ldsr0}")
    E(f"    v_bfe_u32 v{v_t}, v{v_lane}, 3, 1")
    E(f"    v_lshl_add_u32 v{v_ldsr0}, v{v_t}, 6, v{v_ldsr0}")
    E(f"    v_xor_b32 v{v_ldsr1}, 64, v{v_ldsr0}")

def gen_k1():
    name = "k1_proj_kernel"
    E(".p2align 8")
    E(f".globl {name}")
    E(f".type {name},@function")
    E(f"{name}:")
    lend = L("k1end")
    E("    s_cmp_ge_u32 s2, 464")
    E(f"    s_cbranch_scc1 {lend}")
    E("    s_load_dwordx2 s[20:21], s[0:1], 0")
    E("    s_load_dwordx2 s[22:23], s[0:1], 8")
    E("    s_load_dwordx2 s[24:25], s[0:1], 16")
    E("    s_load_dwordx2 s[26:27], s[0:1], 24")
    E("    s_load_dwordx2 s[28:29], s[0:1], 48")
    E("    s_load_dwordx2 s[30:31], s[0:1], 64")
    E("    s_load_dwordx2 s[32:33], s[0:1], 88")
    E(f"    s_mov_b32 s3, {(1<<32)//29 + 1}")
    E("    s_mul_hi_u32 s4, s2, s3")
    E("    s_mul_i32 s5, s4, 29")
    E("    s_sub_u32 s5, s2, s5")
    V_LANE, V_LDSW, V_LDSR, V_T, V_XOFF, V_WOFF, V_POS, V_HALF = 1, 2, 3, 4, 5, 6, 7, 8
    V_T2, V_T3, V_LDSR1 = 9, 10, 11
    ACC0, AB0, WST0, XB0 = 16, 48, 64, 120
    XF0, V_XW, V_XR, V_ROW, V_XG = 232, 240, [241, 242, 243, 244], 245, 246
    gemm_lane_setup(V_LANE, V_LDSW, V_LDSR, V_LDSR1, V_T, V_T2)
    E(f"    v_lshrrev_b32 v{V_T}, 6, v0")
    E(f"    v_lshlrev_b32 v{V_POS}, 5, v{V_T}")
    E(f"    v_and_b32 v{V_T}, 31, v0")
    E(f"    v_add_u32 v{V_POS}, v{V_POS}, v{V_T}")
    E("    s_lshl_b32 s6, s4, 7")
    E(f"    v_add_u32 v{V_POS}, s6, v{V_POS}")
    E(f"    v_bfe_u32 v{V_HALF}, v0, 5, 1")
    E(f"    s_movk_i32 s7, 896")
    E(f"    v_mul_lo_u32 v{V_XOFF}, v{V_POS}, s7")
    E(f"    v_lshl_add_u32 v{V_XOFF}, v{V_HALF}, 4, v{V_XOFF}")
    E("    s_waitcnt lgkmcnt(0)")
    srd(8, 20, 21, S * D * 2)
    E(f"    v_lshrrev_b32 v{V_T}, 6, v0")
    E(f"    v_lshlrev_b32 v{V_ROW}, 5, v{V_T}")
    E(f"    v_and_b32 v{V_T}, 31, v0")
    E(f"    v_add_u32 v{V_ROW}, v{V_ROW}, v{V_T}")
    x_lane_setup(V_XW, V_XR, V_ROW, V_T, V_T2, V_HALF)
    E(f"    v_lshrrev_b32 v{V_T}, 3, v0")
    E(f"    v_add_u32 v{V_T}, s6, v{V_T}")
    E(f"    s_movk_i32 s7, 896")
    E(f"    v_mul_lo_u32 v{V_XG}, v{V_T}, s7")
    E(f"    v_and_b32 v{V_T}, 7, v0")
    E(f"    v_lshl_add_u32 v{V_XG}, v{V_T}, 4, v{V_XG}")
    def k1x(c):
        for j in range(4):
            r = XB0 + (c * 4 + j) * 4
            E(f"    s_mov_b32 s40, {j*32*896}")
            E(f"    buffer_load_dwordx4 v[{r}:{r+3}], v{V_XG}, s[8:11], s40 offen offset:{c*128}")
    lspec = L("k1spec")
    lqkv = L("k1qkv")
    E("    s_cmp_eq_u32 s5, 28")
    E(f"    s_cbranch_scc1 {lspec}")
    E("    s_cmp_ge_u32 s5, 7")
    E(f"    s_cbranch_scc1 {lqkv}")

    def normal_path(stride, wbase_lo, wbase_hi, total, colbyte_sgpr):
        E(f"    s_add_u32 s12, s{wbase_lo}, s{colbyte_sgpr}")
        E(f"    s_addc_u32 s13, s{wbase_hi}, 0")
        E(f"    s_sub_u32 s14, {total}, s{colbyte_sgpr}")
        E(f"    s_mov_b32 s15, 0x00020000")
        E(f"    v_lshrrev_b32 v{V_T}, 3, v0")
        E(f"    s_movk_i32 s7, {stride}")
        E(f"    v_mul_lo_u32 v{V_WOFF}, v{V_T}, s7")
        E(f"    v_and_b32 v{V_T}, 7, v0")
        E(f"    v_lshl_add_u32 v{V_WOFF}, v{V_T}, 4, v{V_WOFF}")
        for i in range(14):
            if i % 2 == 0:
                k1x(i // 2)
            E(f"    s_mov_b32 s41, {i*32*stride}")
            E(f"    buffer_load_dwordx4 v[{WST0+4*i}:{WST0+4*i+3}], v{V_WOFF}, s[12:15], s41 offen")
        gemm3(2, [0, 1], 4, ACC0, AB0, XF0, WST0, XB0, V_LDSW, V_LDSR, V_LDSR1, V_XW, V_XR, 24576, 16384)

    E("    s_lshl_b32 s6, s5, 7")
    normal_path(896, 22, 23, 448 * 448 * 2, 6)
    srd(16, 32, 33, SZ_QA, WS_QA)
    E("    s_lshl_b32 s6, s5, 4")
    for nt in range(2):
        for q in range(4):
            a = ACC0 + nt * 16 + q * 4
            E(f"    v_add_u32 v{V_T}, {nt*8+q*2}, v{V_HALF}")
            E(f"    v_add_u32 v{V_T}, s6, v{V_T}")
            E(f"    v_mul_u32_u24 v{V_T2}, 147, v{V_T}")
            E(f"    v_lshrrev_b32 v{V_T2}, 10, v{V_T2}")
            E(f"    v_mul_u32_u24 v{V_T3}, 7, v{V_T2}")
            E(f"    v_sub_u32 v{V_T}, v{V_T}, v{V_T3}")
            E(f"    v_lshlrev_b32 v{V_T3}, 17, v{V_T2}")
            E(f"    v_lshl_add_u32 v{V_T3}, v{V_POS}, 6, v{V_T3}")
            E(f"    v_lshl_add_u32 v{V_T3}, v{V_T}, 3, v{V_T3}")
            for i in range(4):
                E(f"    v_mul_f32 v{a+i}, 0x{QSC:08x}, v{a+i}")
            E(f"    v_cvt_pk_bf16_f32 v12, v{a}, v{a+1}")
            E(f"    v_cvt_pk_bf16_f32 v13, v{a+2}, v{a+3}")
            E(f"    buffer_store_dwordx2 v[12:13], v{V_T3}, s[16:19], 0 offen")
            E(f"    v_cmp_eq_u32 vcc, 6, v{V_T}")
            E(f"    v_mov_b32 v14, 0")
            E(f"    v_mov_b32 v15, 0")
            E(f"    s_and_saveexec_b64 s[36:37], vcc")
            lsk = L("k1z")
            E(f"    s_cbranch_execz {lsk}")
            E(f"    buffer_store_dwordx2 v[14:15], v{V_T3}, s[16:19], 0 offen offset:8")
            E(f"{lsk}:")
            E(f"    s_mov_b64 exec, s[36:37]")
    E(f"    s_branch {lend}")

    E(f"{lqkv}:")
    E("    s_sub_u32 s6, s5, 7")
    E("    s_lshl_b32 s6, s6, 7")
    normal_path(2688, 28, 29, 448 * 1344 * 2, 6)
    srd(16, 32, 33, SZ_QKVB, WS_QKVB)
    E(f"    s_movk_i32 s7, 2688")
    E(f"    v_mul_lo_u32 v{V_T3}, v{V_POS}, s7")
    E(f"    v_lshl_add_u32 v{V_T3}, v{V_HALF}, 3, v{V_T3}")
    E(f"    v_add_u32 v{V_T3}, s6, v{V_T3}")
    for nt in range(2):
        for q in range(4):
            a = ACC0 + nt * 16 + q * 4
            E(f"    v_cvt_pk_bf16_f32 v12, v{a}, v{a+1}")
            E(f"    v_cvt_pk_bf16_f32 v13, v{a+2}, v{a+3}")
            E(f"    buffer_store_dwordx2 v[12:13], v{V_T3}, s[16:19], 0 offen offset:{(nt*32+q*8)*2}")
            E(f"    s_nop 0")
    E(f"    s_branch {lend}")

    E(f"{lspec}:")
    for c in range(7):
        k1x(c)
    srd(48, 30, 31, 448 * 2)
    E(f"    v_lshrrev_b32 v{V_T}, 3, v0")
    E(f"    v_and_b32 v{V_T2}, 7, v0")
    E(f"    v_cmp_gt_u32 vcc, 4, v{V_T2}")
    E(f"    v_mov_b32 v16, s26")
    E(f"    v_mov_b32 v17, s27")
    E(f"    v_mov_b32 v18, s24")
    E(f"    v_mov_b32 v19, s25")
    E(f"    v_cndmask_b32 v16, v16, v18, vcc")
    E(f"    v_cndmask_b32 v17, v17, v19, vcc")
    E(f"    v_and_b32 v18, 3, v{V_T2}")
    E(f"    v_mul_u32_u24 v19, 56, v{V_T}")
    E(f"    v_lshl_add_u32 v19, v18, 4, v19")
    E(f"    v_add_co_u32 v16, vcc, v16, v19")
    E("    s_nop 1")
    E(f"    v_addc_co_u32 v17, vcc, 0, v17, vcc")
    E(f"    v_cmp_eq_u32 vcc, 3, v18")
    E(f"    v_mov_b32 v20, 8")
    E("    s_nop 0")
    E(f"    v_cndmask_b32 v20, v20, 0, vcc")
    E(f"    v_add_co_u32 v22, vcc, v16, v20")
    E("    s_nop 1")
    E(f"    v_addc_co_u32 v23, vcc, 0, v17, vcc")
    E(f"    v_lshlrev_b32 v21, 1, v{V_T}")
    E(f"    v_mov_b32 v24, 0x7fffffff")
    E(f"    v_cmp_eq_u32 vcc, 7, v{V_T2}")
    E("    s_nop 1")
    E(f"    v_cndmask_b32 v21, v24, v21, vcc")
    for i in range(14):
        E(f"    global_load_dwordx2 v[{WST0+4*i}:{WST0+4*i+1}], v[16:17], off offset:{i*32*56 if i*32*56 < 4096 else 0}")
        E(f"    global_load_dwordx2 v[{WST0+4*i+2}:{WST0+4*i+3}], v[22:23], off offset:{i*32*56 if i*32*56 < 4096 else 0}")
        E(f"    s_mov_b32 s42, {i*64}")
        E(f"    buffer_load_ushort v{26+i}, v21, s[48:51], s42 offen")
        if (i + 1) * 32 * 56 >= 4096:
            E(f"    v_add_co_u32 v16, vcc, {32*56 if i*32*56 >= 4096 else (i+1)*32*56}, v16")
            E("    s_nop 1")
            E(f"    v_addc_co_u32 v17, vcc, 0, v17, vcc")
            E(f"    v_add_co_u32 v22, vcc, {32*56 if i*32*56 >= 4096 else (i+1)*32*56}, v22")
            E("    s_nop 1")
            E(f"    v_addc_co_u32 v23, vcc, 0, v23, vcc")
    E(f"    v_cmp_eq_u32 vcc, 3, v18")
    E("    s_waitcnt vmcnt(0)")
    for i in range(14):
        E(f"    v_cndmask_b32 v{WST0+4*i+2}, v{WST0+4*i+2}, v{26+i}, vcc")
        E(f"    v_cndmask_b32 v{WST0+4*i+3}, v{WST0+4*i+3}, 0, vcc")
    gemm3(2, [0, 1], 4, ACC0, AB0, XF0, WST0, XB0, V_LDSW, V_LDSR, V_LDSR1, V_XW, V_XR, 24576, 16384, inorder=False)
    srd(16, 32, 33, SZ_KA, WS_KA)
    srd(44, 32, 33, SZ_KA, WS_VT)
    srd(48, 32, 33, SZ_GATE, WS_GATE)
    E(f"    v_lshrrev_b32 v{V_T}, 5, v{V_POS}")
    E(f"    v_lshlrev_b32 v{V_T2}, 11, v{V_T}")
    E(f"    v_and_b32 v{V_T}, 31, v{V_POS}")
    E(f"    v_lshl_add_u32 v{V_T2}, v{V_T}, 4, v{V_T2}")
    E(f"    v_lshrrev_b32 v{V_T}, 5, v{V_POS}")
    E(f"    v_lshlrev_b32 v{V_T3}, 11, v{V_T}")
    E(f"    v_bfe_u32 v{V_T}, v{V_POS}, 4, 1")
    E(f"    v_lshl_add_u32 v{V_T3}, v{V_T}, 10, v{V_T3}")
    E(f"    v_bfe_u32 v{V_T}, v{V_POS}, 2, 1")
    E(f"    v_lshl_add_u32 v{V_T3}, v{V_T}, 9, v{V_T3}")
    E(f"    v_bfe_u32 v{V_T}, v{V_POS}, 3, 1")
    E(f"    v_lshl_add_u32 v{V_T3}, v{V_T}, 3, v{V_T3}")
    E(f"    v_and_b32 v{V_T}, 3, v{V_POS}")
    E(f"    v_lshl_add_u32 v{V_T3}, v{V_T}, 1, v{V_T3}")
    E(f"    v_mov_b32 v14, 0")
    E(f"    v_mov_b32 v15, 0")
    E(f"    v_mov_b32 v11, 0x3f80")
    for nt in range(2):
        for q in range(4):
            a = ACC0 + nt * 16 + q * 4
            for half in range(2):
                n4 = nt * 8 + q * 2 + half
                if n4 == 7:
                    continue
                E(f"    s_mov_b32 exec_lo, {0 if half else -1}")
                E(f"    s_mov_b32 exec_hi, {-1 if half else 0}")
                if n4 < 7:
                    d = n4 * 4
                    off = (d // 16) * 1024 + ((d % 16) // 8) * 512 + (d % 8) * 2
                    E(f"    v_cvt_pk_bf16_f32 v12, v{a}, v{a+1}")
                    E(f"    v_cvt_pk_bf16_f32 v13, v{a+2}, v{a+3}")
                    E(f"    buffer_store_dwordx2 v[12:13], v{V_T2}, s[16:19], 0 offen offset:{off}")
                    if d == 24:
                        E(f"    v_mov_b32 v14, 0x3f80")
                        E(f"    buffer_store_dwordx2 v[14:15], v{V_T2}, s[16:19], 0 offen offset:{off+8}")
                        E("    s_nop 1")
                        E(f"    v_mov_b32 v14, 0")
                    E("    s_nop 0")
                elif n4 < 15:
                    dv = (n4 - 8) * 4
                    E(f"    v_cvt_pk_bf16_f32 v12, v{a}, v{a+1}")
                    E(f"    v_cvt_pk_bf16_f32 v13, v{a+2}, v{a+3}")
                    E(f"    buffer_store_short v12, v{V_T3}, s[44:47], 0 offen offset:{dv*16}")
                    E(f"    buffer_store_short_d16_hi v12, v{V_T3}, s[44:47], 0 offen offset:{(dv+1)*16}")
                    E(f"    buffer_store_short v13, v{V_T3}, s[44:47], 0 offen offset:{(dv+2)*16}")
                    E(f"    buffer_store_short_d16_hi v13, v{V_T3}, s[44:47], 0 offen offset:{(dv+3)*16}")
                    if dv == 24:
                        E(f"    buffer_store_short v11, v{V_T3}, s[44:47], 0 offen offset:{28*16}")
                        E(f"    buffer_store_short v14, v{V_T3}, s[44:47], 0 offen offset:{29*16}")
                        E(f"    buffer_store_short v14, v{V_T3}, s[44:47], 0 offen offset:{30*16}")
                        E(f"    buffer_store_short v14, v{V_T3}, s[44:47], 0 offen offset:{31*16}")
                    E("    s_nop 0")
                else:
                    E(f"    v_lshlrev_b32 v12, 2, v{V_POS}")
                    E(f"    buffer_store_dword v{a}, v12, s[48:51], 0 offen")
    E("    s_mov_b64 exec, -1")
    E(f"{lend}:")
    E("    s_endpgm")
    kernel_desc(name, 248)

def gen_k3():
    name = "k3_out_kernel"
    E(".text")
    E(".p2align 8")
    E(f".globl {name}")
    E(f".type {name},@function")
    E(f"{name}:")
    lend = L("k3end")
    E("    s_cmp_ge_u32 s2, 224")
    E(f"    s_cbranch_scc1 {lend}")
    stamp(0)
    E("    s_load_dwordx2 s[20:21], s[0:1], 88")
    E("    s_load_dwordx2 s[22:23], s[0:1], 32")
    E("    s_load_dwordx2 s[24:25], s[0:1], 56")
    E("    s_load_dwordx2 s[26:27], s[0:1], 72")
    E(f"    s_mov_b32 s3, {(1<<32)//7 + 1}")
    E("    s_mul_hi_u32 s4, s2, s3")
    E("    s_mul_i32 s5, s4, 7")
    E("    s_sub_u32 s5, s2, s5")
    V_LANE, V_LDSW, V_LDSR, V_T, V_XOFF, V_WOFF, V_POS, V_HALF = 1, 2, 3, 4, 5, 6, 7, 8
    V_T2, V_T3, V_LDSR1 = 9, 10, 11
    ACC0, AB0, WST0, XB0 = 16, 48, 64, 120
    XF0, V_XW, V_XR, V_ROW, V_XG = 232, 240, [241, 242, 243, 244], 245, 246
    gemm_lane_setup(V_LANE, V_LDSW, V_LDSR, V_LDSR1, V_T, V_T2)
    E(f"    v_lshrrev_b32 v{V_T}, 8, v0")
    E("    s_nop 0")
    E(f"    v_readfirstlane_b32 s34, v{V_T}")
    E(f"    v_bfe_u32 v{V_T}, v0, 7, 1")
    E(f"    v_lshlrev_b32 v{V_POS}, 5, v{V_T}")
    E(f"    v_and_b32 v{V_T}, 31, v0")
    E(f"    v_add_u32 v{V_POS}, v{V_POS}, v{V_T}")
    E("    s_lshl_b32 s6, s4, 6")
    E(f"    v_add_u32 v{V_POS}, s6, v{V_POS}")
    E(f"    v_bfe_u32 v{V_HALF}, v0, 5, 1")
    E(f"    s_movk_i32 s7, 1792")
    E(f"    v_mul_lo_u32 v{V_XOFF}, v{V_POS}, s7")
    E(f"    v_lshl_add_u32 v{V_XOFF}, v{V_HALF}, 4, v{V_XOFF}")
    E("    s_mul_i32 s35, s34, 896")
    E(f"    v_add_u32 v{V_XOFF}, s35, v{V_XOFF}")
    E(f"    v_bfe_u32 v{V_T}, v0, 6, 1")
    E(f"    v_cmp_eq_u32 vcc, 1, v{V_T}")
    E("    s_mul_i32 s35, s34, 32768")
    E(f"    v_cndmask_b32 v{V_LDSR}, v{V_LDSR}, v{V_LDSR1}, vcc")
    E(f"    v_add_u32 v{V_LDSR}, s35, v{V_LDSR}")
    E(f"    v_add_u32 v{V_LDSW}, s35, v{V_LDSW}")
    E("    s_waitcnt lgkmcnt(0)")
    srd(8, 20, 21, SZ_OAB, WS_OAB)
    E(f"    v_bfe_u32 v{V_T}, v0, 7, 1")
    E(f"    v_lshlrev_b32 v{V_ROW}, 5, v{V_T}")
    E(f"    v_and_b32 v{V_T}, 31, v0")
    E(f"    v_add_u32 v{V_ROW}, v{V_ROW}, v{V_T}")
    x_lane_setup(V_XW, V_XR, V_ROW, V_T, V_T2, V_HALF)
    E(f"    v_add_u32 v{V_XW}, s35, v{V_XW}")
    for ks in range(4):
        E(f"    v_add_u32 v{V_XR[ks]}, s35, v{V_XR[ks]}")
    E(f"    v_bfe_u32 v{V_T}, v0, 3, 5")
    E(f"    v_add_u32 v{V_T}, s6, v{V_T}")
    E(f"    s_movk_i32 s7, 1792")
    E(f"    v_mul_lo_u32 v{V_XG}, v{V_T}, s7")
    E(f"    v_and_b32 v{V_T}, 7, v0")
    E(f"    v_lshl_add_u32 v{V_XG}, v{V_T}, 4, v{V_XG}")
    E("    s_mul_i32 s36, s34, 896")
    E(f"    v_add_u32 v{V_XG}, s36, v{V_XG}")
    def k3x(c):
        for j in range(2):
            r = XB0 + (c * 2 + j) * 4
            E(f"    s_mov_b32 s40, {j*32*1792}")
            E(f"    buffer_load_dwordx4 v[{r}:{r+3}], v{V_XG}, s[8:11], s40 offen offset:{c*128}")
    E("    s_lshl_b32 s6, s5, 7")
    E("    s_cmp_eq_u32 s34, 0")
    E("    s_cselect_b32 s12, s22, s24")
    E("    s_cselect_b32 s13, s23, s25")
    E(f"    s_add_u32 s12, s12, s6")
    E(f"    s_addc_u32 s13, s13, 0")
    E(f"    s_sub_u32 s14, {448*448*2}, s6")
    E(f"    s_mov_b32 s15, 0x00020000")
    stride = 896
    E(f"    v_bfe_u32 v{V_T}, v0, 3, 5")
    E(f"    s_movk_i32 s7, {stride}")
    E(f"    v_mul_lo_u32 v{V_WOFF}, v{V_T}, s7")
    E(f"    v_and_b32 v{V_T}, 7, v0")
    E(f"    v_lshl_add_u32 v{V_WOFF}, v{V_T}, 4, v{V_WOFF}")
    for i in range(14):
        if i % 2 == 0:
            k3x(i // 2)
        E(f"    s_mov_b32 s41, {i*32*stride}")
        E(f"    buffer_load_dwordx4 v[{WST0+4*i}:{WST0+4*i+3}], v{V_WOFF}, s[12:15], s41 offen")
    gemm3(1, [0], 2, ACC0, AB0, XF0, WST0, XB0, V_LDSW, V_LDSR, V_LDSR1, V_XW, V_XR, 16384, 8192)
    stamp(3)
    E("    s_barrier")
    E(f"    v_bfe_u32 v{V_T}, v0, 6, 2")
    E(f"    v_lshlrev_b32 v{V_T}, 12, v{V_T}")
    E(f"    v_lshl_add_u32 v{V_T}, v{V_LANE}, 4, v{V_T}")
    lup = L("k3up")
    E("    s_cmp_eq_u32 s34, 1")
    E(f"    s_cbranch_scc1 {lup}")
    E("    s_barrier")
    for i in range(4):
        E(f"    ds_read_b128 v[{WST0+4*i}:{WST0+4*i+3}], v{V_T} offset:{i*1024}")
    E("    s_waitcnt lgkmcnt(0)")
    for i in range(16):
        E(f"    v_add_f32 v{ACC0+i}, v{ACC0+i}, v{WST0+i}")
    srd(16, 26, 27, S * D * 2)
    E(f"    s_movk_i32 s7, 896")
    E(f"    v_mul_lo_u32 v{V_T3}, v{V_POS}, s7")
    E(f"    v_lshl_add_u32 v{V_T3}, v{V_HALF}, 3, v{V_T3}")
    E(f"    v_add_u32 v{V_T3}, s6, v{V_T3}")
    E(f"    v_bfe_u32 v{V_T}, v0, 6, 1")
    E(f"    v_lshl_add_u32 v{V_T3}, v{V_T}, 6, v{V_T3}")
    for q in range(4):
        a = ACC0 + q * 4
        E(f"    v_cvt_pk_bf16_f32 v12, v{a}, v{a+1}")
        E(f"    v_cvt_pk_bf16_f32 v13, v{a+2}, v{a+3}")
        E(f"    buffer_store_dwordx2 v[12:13], v{V_T3}, s[16:19], 0 offen offset:{q*16}")
        E("    s_nop 0")
    stamp(4)
    stamp_flush(5)
    E(f"    s_branch {lend}")
    E(f"{lup}:")
    for i in range(4):
        E(f"    ds_write_b128 v{V_T}, v[{ACC0+4*i}:{ACC0+4*i+3}] offset:{i*1024}")
    E("    s_waitcnt lgkmcnt(0)")
    E("    s_barrier")
    E(f"{lend}:")
    E("    s_endpgm")
    kernel_desc(name, 248)

import math
CSC = (28 ** -0.5) * math.log2(math.e)
import struct
def f32bits(x):
    return struct.unpack("<I", struct.pack("<f", x))[0]

def gen_k2():
    name = "k2_attn_kernel"
    E(".text")
    E(".p2align 8")
    E(f".globl {name}")
    E(f".type {name},@function")
    E(f"{name}:")
    lend = L("k2end")
    E("    s_cmp_ge_u32 s2, 256")
    E(f"    s_cbranch_scc1 {lend}")
    E("    s_load_dwordx2 s[20:21], s[0:1], 88")
    E("    s_lshr_b32 s4, s2, 4")
    E("    s_and_b32 s5, s2, 15")
    V_LANE, V_T, V_T2, V_GOFF, V_LW, V_LR, V_POS, V_HALF, V_M = 1, 2, 3, 4, 5, 6, 7, 8, 9
    V_A, V_B, V_TM = 10, 11, 12
    Q0, SREG, PREG, OREG, KF, VF, STG = 16, 32, 48, 64, 80, 88, 96
    E(f"    v_and_b32 v{V_LANE}, 63, v0")
    E(f"    v_lshrrev_b32 v{V_T}, 6, v0")
    E("    s_nop 0")
    E(f"    v_readfirstlane_b32 s6, v{V_T}")
    E("    s_and_b32 s7, s6, 3")
    E("    s_lshr_b32 s34, s6, 2")
    E(f"    v_bfe_u32 v{V_HALF}, v0, 5, 1")
    E("    s_lshl_b32 s35, s5, 7")
    E("    s_lshl_b32 s36, s7, 5")
    E("    s_add_u32 s35, s35, s36")
    E(f"    v_and_b32 v{V_T}, 31, v0")
    E(f"    v_add_u32 v{V_POS}, s35, v{V_T}")
    E("    s_waitcnt lgkmcnt(0)")
    srd(8, 20, 21, SZ_QA, WS_QA)
    srd(12, 20, 21, 2 * SZ_KA, WS_KA)
    E("    s_lshl_b32 s36, s4, 17")
    E(f"    v_lshlrev_b32 v{V_T}, 6, v{V_POS}")
    E(f"    v_lshl_add_u32 v{V_T}, v{V_HALF}, 4, v{V_T}")
    E(f"    v_add_u32 v{V_T}, s36, v{V_T}")
    E(f"    buffer_load_dwordx4 v[{Q0}:{Q0+3}], v{V_T}, s[8:11], 0 offen")
    E(f"    buffer_load_dwordx4 v[{Q0+4}:{Q0+7}], v{V_T}, s[8:11], 0 offen offset:32")
    E(f"    v_lshrrev_b32 v{V_T}, 8, v0")
    E(f"    v_lshlrev_b32 v{V_GOFF}, 16, v{V_T}")
    E(f"    v_and_b32 v{V_T2}, 255, v0")
    E(f"    v_lshl_add_u32 v{V_GOFF}, v{V_T2}, 4, v{V_GOFF}")
    E(f"    v_lshlrev_b32 v{V_LW}, 12, v{V_T}")
    E(f"    v_lshl_add_u32 v{V_LW}, v{V_T2}, 4, v{V_LW}")
    E(f"    v_lshlrev_b32 v{V_LR}, 4, v{V_LANE}")
    E("    s_lshl_b32 s36, s34, 12")
    E(f"    v_add_u32 v{V_LR}, s36, v{V_LR}")
    for i in range(16):
        E(f"    v_mov_b32 v{OREG+i}, 0")
    E(f"    v_mov_b32 v{V_M}, 0")
    QB = 24
    def KBr(w): return 144 + 8 * w
    def VBr(w): return 208 + 8 * w if w < 6 else 80 + 8 * (w - 6)
    lnob = L("k2nob")
    E("    s_cmp_lt_u32 s6, 4")
    E(f"    s_cbranch_scc1 {lnob}")
    srd(84, 20, 21, SZ_QKVB, WS_QKVB)
    E(f"    v_lshrrev_b32 v{V_T}, 1, v{V_LANE}")
    E(f"    v_add_u32 v{V_A}, s35, v{V_T}")
    E(f"    v_and_b32 v{V_T2}, 1, v{V_LANE}")
    E("    s_movk_i32 s36, 2688")
    E(f"    v_mul_lo_u32 v{V_B}, v{V_A}, s36")
    E(f"    v_mul_u32_u24 v{V_T}, 28, v{V_T2}")
    E(f"    v_add_u32 v{V_B}, v{V_B}, v{V_T}")
    E("    s_mul_i32 s36, s4, 56")
    E(f"    v_add_u32 v{V_B}, s36, v{V_B}")
    E(f"    buffer_load_dwordx4 v[{QB}:{QB+3}], v{V_B}, s[84:87], 0 offen")
    E(f"    buffer_load_dwordx3 v[{QB+4}:{QB+6}], v{V_B}, s[84:87], 0 offen offset:16")
    E(f"    v_and_b32 v{V_T2}, 255, v0")
    E("    s_lshl_b32 s36, s5, 7")
    E("    s_sub_u32 s36, s36, 14")
    E("    s_mul_i32 s43, s4, 56")
    E("    s_add_u32 s43, s43, 896")
    for i in range(16):
        E(f"    v_add_u32 v{V_T}, {256*i}, v{V_T2}")
        E(f"    v_mul_u32_u24 v{V_A}, 2341, v{V_T}")
        E(f"    v_lshrrev_b32 v{V_A}, 16, v{V_A}")
        E(f"    v_mul_u32_u24 v{V_B}, 28, v{V_A}")
        E(f"    v_sub_u32 v{V_B}, v{V_T}, v{V_B}")
        E(f"    v_lshlrev_b32 v{144+i}, 2, v{V_T}")
        E(f"    v_add_u32 v{V_A}, s36, v{V_A}")
        E(f"    v_cmp_gt_u32 vcc, 14, v{V_B}")
        E(f"    v_lshlrev_b32 v{V_B}, 2, v{V_B}")
        E(f"    v_add_u32 v{V_TM}, {896-56}, v{V_B}")
        E(f"    v_cndmask_b32 v{V_B}, v{V_TM}, v{V_B}, vcc")
        E("    s_movk_i32 s44, 2688")
        E(f"    v_mul_lo_u32 v{V_TM}, v{V_A}, s44")
        E(f"    v_add3_u32 v{V_B}, v{V_B}, v{V_TM}, s43")
        E(f"    v_cmp_gt_u32 vcc, 2048, v{V_A}")
        E(f"    v_mov_b32 v{V_TM}, 0x7ffffff0")
        if i == 15:
            E("    s_movk_i32 s45, 3976")
            E(f"    v_cmp_gt_u32 s[46:47], s45, v{V_T}")
            E("    s_nop 1")
            E("    s_and_b64 vcc, vcc, s[46:47]")
        E("    s_nop 1")
        E(f"    v_cndmask_b32 v{V_B}, v{V_TM}, v{V_B}, vcc")
        E(f"    buffer_load_dword v{160+i}, v{V_B}, s[84:87], 0 offen")
    E("    s_waitcnt vmcnt(0)")
    for i in range(16):
        if i == 15:
            E(f"    v_cmp_gt_u32 vcc, {3976*4}, v{144+i}")
            E("    s_and_saveexec_b64 s[46:47], vcc")
        E(f"    ds_write_b32 v{144+i}, v{160+i} offset:32768")
    E("    s_mov_b64 exec, -1")
    E(f"{lnob}:")
    E(f"    s_mov_b32 s37, {f32bits(CSC)}")
    E(f"    s_mov_b32 s38, 0xff800000")
    E("    s_mov_b32 s45, 0xff800000")
    E("    s_mov_b32 s39, 0x20000")
    def gload(sidx_sgpr):
        E(f"    buffer_load_dwordx4 v[{STG}:{STG+3}], v{V_GOFF}, s[12:15], s{sidx_sgpr} offen")
        E(f"    s_add_u32 s43, s{sidx_sgpr}, s39")
        E(f"    buffer_load_dwordx4 v[{STG+4}:{STG+7}], v{V_GOFF}, s[12:15], s43 offen")
    def lwrite(buf):
        E(f"    ds_write_b128 v{V_LW}, v[{STG}:{STG+3}] offset:{buf*16384}")
        E(f"    ds_write_b128 v{V_LW}, v[{STG+4}:{STG+7}] offset:{buf*16384+8192}")
    E("    s_mov_b32 s42, 0")
    gload(42)
    E("    s_waitcnt vmcnt(0)")
    lwrite(0)
    E("    s_waitcnt lgkmcnt(0)")
    E("    s_barrier")
    E("    s_mov_b32 s41, 0")
    lloop = L("k2loop")
    E(f"{lloop}:")
    S1, KF2, VF2, P1 = 104, 120, 128, 136
    def stage_compute(buf):
        o = buf * 16384
        for tt, (kf, vf) in enumerate([(KF, VF), (KF2, VF2)]):
            E(f"    ds_read_b128 v[{kf}:{kf+3}], v{V_LR} offset:{o+tt*2048}")
            E(f"    ds_read_b128 v[{kf+4}:{kf+7}], v{V_LR} offset:{o+tt*2048+1024}")
        for tt, (kf, vf) in enumerate([(KF, VF), (KF2, VF2)]):
            E(f"    ds_read_b128 v[{vf}:{vf+3}], v{V_LR} offset:{o+tt*2048+8192}")
            E(f"    ds_read_b128 v[{vf+4}:{vf+7}], v{V_LR} offset:{o+tt*2048+8192+1024}")
        E("    s_waitcnt lgkmcnt(6)")
        E(f"    v_mfma_f32_32x32x16_bf16 v[{SREG}:{SREG+15}], v[{KF}:{KF+3}], v[{Q0}:{Q0+3}], 0")
        E(f"    v_mfma_f32_32x32x16_bf16 v[{SREG}:{SREG+15}], v[{KF+4}:{KF+7}], v[{Q0+4}:{Q0+7}], v[{SREG}:{SREG+15}]")
        E("    s_waitcnt lgkmcnt(4)")
        E(f"    v_mfma_f32_32x32x16_bf16 v[{S1}:{S1+15}], v[{KF2}:{KF2+3}], v[{Q0}:{Q0+3}], 0")
        E(f"    v_mfma_f32_32x32x16_bf16 v[{S1}:{S1+15}], v[{KF2+4}:{KF2+7}], v[{Q0+4}:{Q0+7}], v[{S1}:{S1+15}]")
        E("    s_nop 9")
        E(f"    v_max3_f32 v{V_A}, v{SREG}, v{SREG+1}, v{SREG+2}")
        for i in range(3, 15, 2):
            E(f"    v_max3_f32 v{V_A}, v{V_A}, v{SREG+i}, v{SREG+i+1}")
        E(f"    v_max3_f32 v{V_A}, v{V_A}, v{SREG+15}, v{S1}")
        for i in range(1, 15, 2):
            E(f"    v_max3_f32 v{V_A}, v{V_A}, v{S1+i}, v{S1+i+1}")
        E(f"    v_max_f32 v{V_A}, v{V_A}, v{S1+15}")
        E(f"    v_mov_b32 v{V_B}, v{V_A}")
        E("    s_nop 1")
        E(f"    v_permlane32_swap_b32 v{V_A}, v{V_B}")
        E(f"    v_max_f32 v{V_A}, v{V_A}, v{V_B}")
        E(f"    v_cmp_lt_f32 vcc, s38, v{V_A}")
        lsk = L("k2sk")
        E(f"    s_cbranch_vccz {lsk}")
        E(f"    v_max_f32 v{V_A}, s45, v{V_A}")
        E(f"    v_add_f32 v{V_TM}, v{V_M}, v{V_A}")
        E(f"    v_and_b32 v{V_TM}, 0xffff0000, v{V_TM}")
        E(f"    v_sub_f32 v{V_A}, v{V_TM}, v{V_M}")
        E(f"    v_mov_b32 v{V_M}, v{V_TM}")
        E(f"    v_exp_f32 v{V_B}, -v{V_A}")
        E(f"    v_xor_b32 v{V_TM}, 0x80000000, v{V_TM}")
        E(f"    v_lshrrev_b32 v{V_TM}, 16, v{V_TM}")
        E("    s_mov_b32 exec_lo, 0")
        E(f"    v_mov_b32 v{Q0+6}, v{V_TM}")
        E("    s_mov_b32 exec_lo, -1")
        for i in range(16):
            E(f"    v_mul_f32 v{OREG+i}, v{OREG+i}, v{V_B}")
            E(f"    v_sub_f32 v{SREG+i}, v{SREG+i}, v{V_A}")
            E(f"    v_sub_f32 v{S1+i}, v{S1+i}, v{V_A}")
        E(f"{lsk}:")
        E("    s_mov_b32 s38, 0x41000000")
        E("    s_mov_b32 s45, 0")
        for (sr, pr, vf) in [(SREG, PREG, VF), (S1, P1, VF2)]:
            for i in range(16):
                E(f"    v_exp_f32 v{sr+i}, v{sr+i}")
            E("    s_nop 0")
            for i in range(8):
                E(f"    v_cvt_pk_bf16_f32 v{pr+i}, v{sr+2*i}, v{sr+2*i+1}")
            E("    s_waitcnt lgkmcnt(0)")
            E("    s_nop 1")
            E(f"    v_mfma_f32_32x32x16_bf16 v[{OREG}:{OREG+15}], v[{vf}:{vf+3}], v[{pr}:{pr+3}], v[{OREG}:{OREG+15}]")
            E(f"    v_mfma_f32_32x32x16_bf16 v[{OREG}:{OREG+15}], v[{vf+4}:{vf+7}], v[{pr+4}:{pr+7}], v[{OREG}:{OREG+15}]")
    for buf in range(2):
        lnl = L("k2nl")
        E("    s_add_u32 s42, s41, 1")
        E("    s_cmp_ge_u32 s42, 16")
        E(f"    s_cbranch_scc1 {lnl}")
        E("    s_lshl_b32 s42, s42, 12")
        gload(42)
        E(f"{lnl}:")
        stage_compute(buf)
        E("    s_waitcnt vmcnt(0)")
        lwrite(1 - buf)
        E("    s_waitcnt lgkmcnt(0)")
        E("    s_barrier")
        E("    s_add_u32 s41, s41, 1")
    E("    s_cmp_lt_u32 s41, 16")
    E(f"    s_cbranch_scc1 {lloop}")
    E("    s_nop 15")
    lupper = L("k2up")
    E("    s_cmp_ge_u32 s6, 4")
    E(f"    s_cbranch_scc1 {lupper}")
    E("    s_barrier")
    E(f"    v_lshlrev_b32 v{V_T}, 4, v{V_LANE}")
    E("    s_mul_i32 s36, s7, 5120")
    E(f"    v_add_u32 v{V_T}, s36, v{V_T}")
    for i in range(4):
        E(f"    ds_read_b128 v[{SREG+4*i}:{SREG+4*i+3}], v{V_T} offset:{i*1024}")
    E(f"    v_lshlrev_b32 v{V_T2}, 2, v{V_LANE}")
    E(f"    v_add_u32 v{V_T2}, s36, v{V_T2}")
    E(f"    ds_read_b32 v{V_A}, v{V_T2} offset:4096")
    srd(16, 20, 21, SZ_GATE, WS_GATE)
    E(f"    v_lshlrev_b32 v{V_T}, 2, v{V_POS}")
    E(f"    buffer_load_dword v{V_B}, v{V_T}, s[16:19], 0 offen")
    E("    s_waitcnt lgkmcnt(0)")
    E(f"    v_max_f32 v{V_TM}, v{V_M}, v{V_A}")
    E(f"    v_sub_f32 v{V_M}, v{V_M}, v{V_TM}")
    E(f"    v_sub_f32 v{V_A}, v{V_A}, v{V_TM}")
    E(f"    v_exp_f32 v{V_M}, v{V_M}")
    E(f"    v_exp_f32 v{V_A}, v{V_A}")
    E("    s_nop 0")
    for i in range(16):
        E(f"    v_mul_f32 v{OREG+i}, v{OREG+i}, v{V_M}")
        E(f"    v_fmac_f32 v{OREG+i}, v{SREG+i}, v{V_A}")
    E(f"    v_mov_b32 v{V_T}, v{OREG+12}")
    E(f"    v_mov_b32 v{V_T2}, v{OREG+12}")
    E("    s_nop 1")
    E(f"    v_permlane32_swap_b32 v{V_T}, v{V_T2}")
    E(f"    v_rcp_f32 v{V_T2}, v{V_T2}")
    E("    s_waitcnt vmcnt(0)")
    E(f"    v_mul_f32 v{V_B}, 0xbfb8aa3b, v{V_B}")
    E(f"    v_exp_f32 v{V_B}, v{V_B}")
    E("    s_nop 0")
    E(f"    v_add_f32 v{V_B}, 1.0, v{V_B}")
    E(f"    v_rcp_f32 v{V_B}, v{V_B}")
    E("    s_nop 0")
    E(f"    v_mul_f32 v{V_T2}, v{V_T2}, v{V_B}")
    srd(16, 20, 21, SZ_OAB, WS_OAB)
    E("    s_movk_i32 s36, 1792")
    E(f"    v_mul_lo_u32 v{V_T}, v{V_POS}, s36")
    E("    s_mul_i32 s36, s4, 56")
    E(f"    v_add_u32 v{V_T}, s36, v{V_T}")
    E(f"    v_lshl_add_u32 v{V_T}, v{V_HALF}, 3, v{V_T}")
    for q in range(4):
        for i in range(4):
            E(f"    v_mul_f32 v{OREG+4*q+i}, v{OREG+4*q+i}, v{V_T2}")
        E(f"    v_cvt_pk_bf16_f32 v{PREG+2*q}, v{OREG+4*q}, v{OREG+4*q+1}")
        E(f"    v_cvt_pk_bf16_f32 v{PREG+2*q+1}, v{OREG+4*q+2}, v{OREG+4*q+3}")
        if q == 3:
            E("    s_mov_b32 exec_hi, 0")
        E(f"    buffer_store_dwordx2 v[{PREG+2*q}:{PREG+2*q+1}], v{V_T}, s[16:19], 0 offen offset:{q*16}")
    E("    s_mov_b64 exec, -1")
    E(f"    s_branch {lend}")
    E(f"{lupper}:")
    E(f"    v_lshlrev_b32 v{V_T}, 4, v{V_LANE}")
    E("    s_mul_i32 s36, s7, 5120")
    E(f"    v_add_u32 v{V_T}, s36, v{V_T}")
    for i in range(4):
        E(f"    ds_write_b128 v{V_T}, v[{OREG+4*i}:{OREG+4*i+3}] offset:{i*1024}")
    E(f"    v_lshlrev_b32 v{V_T2}, 2, v{V_LANE}")
    E(f"    v_add_u32 v{V_T2}, s36, v{V_T2}")
    E(f"    ds_write_b32 v{V_T2}, v{V_M} offset:4096")
    E("    s_waitcnt lgkmcnt(0)")
    E("    s_barrier")
    if os.environ.get("NOB"):
        E(f"    s_branch {lend}")
    E(f"    v_lshrrev_b32 v{V_T}, 1, v{V_LANE}")
    E(f"    v_add_u32 v{V_POS}, s35, v{V_T}")
    E("    s_lshl_b32 s36, s7, 5")
    E(f"    v_add_u32 v{V_T}, s36, v{V_T}")
    E(f"    v_mul_u32_u24 v{V_T}, 112, v{V_T}")
    E(f"    v_and_b32 v{V_T2}, 1, v{V_LANE}")
    E(f"    v_mul_u32_u24 v{V_T2}, 28, v{V_T2}")
    E(f"    v_add_u32 v{V_T}, v{V_T}, v{V_T2}")
    for w in range(8):
        o = 32768 + (14 - 2 * w) * 112
        for j in range(7):
            E(f"    ds_read_b32 v{KBr(w)+j}, v{V_T} offset:{o+4*j}")
            E(f"    ds_read_b32 v{VBr(w)+j}, v{V_T} offset:{o+56+4*j}")
        E("    s_waitcnt lgkmcnt(0)")
    srd(16, 20, 21, SZ_GATE, WS_GATE)
    E(f"    v_lshlrev_b32 v{V_T}, 2, v{V_POS}")
    E(f"    buffer_load_dword v{V_B}, v{V_T}, s[16:19], 0 offen")
    E("    s_waitcnt vmcnt(0)")
    LG = 32
    for w in range(8):
        E(f"    v_mov_b32 v{LG+w}, 0")
        for j in range(7):
            E(f"    v_dot2_f32_bf16 v{LG+w}, v{QB+j}, v{KBr(w)+j}, v{LG+w}")
    E("    s_nop 1")
    for w in range(8):
        E(f"    v_add_f32_dpp v{LG+8}, v{LG+w}, v{LG+w} quad_perm:[1,0,3,2] row_mask:0xf bank_mask:0xf")
        E(f"    v_mul_f32 v{LG+w}, s37, v{LG+8}")
        E(f"    v_cmp_le_u32 vcc, {2*w}, v{V_POS}")
        E(f"    v_mov_b32 v{V_A}, 0xf149f2ca")
        E("    s_nop 0")
        E(f"    v_cndmask_b32 v{LG+w}, v{V_A}, v{LG+w}, vcc")
    E(f"    v_max3_f32 v{V_A}, v{LG}, v{LG+1}, v{LG+2}")
    E(f"    v_max3_f32 v{V_A}, v{V_A}, v{LG+3}, v{LG+4}")
    E(f"    v_max3_f32 v{V_A}, v{V_A}, v{LG+5}, v{LG+6}")
    E(f"    v_max_f32 v{V_A}, v{V_A}, v{LG+7}")
    for w in range(8):
        E(f"    v_sub_f32 v{LG+w}, v{LG+w}, v{V_A}")
        E(f"    v_exp_f32 v{LG+w}, v{LG+w}")
    E("    s_nop 0")
    E(f"    v_add_f32 v{V_A}, v{LG}, v{LG+1}")
    for w in range(2, 8):
        E(f"    v_add_f32 v{V_A}, v{V_A}, v{LG+w}")
    E(f"    v_rcp_f32 v{V_A}, v{V_A}")
    E(f"    v_mul_f32 v{V_B}, 0x3fb8aa3b, v{V_B}")
    E(f"    v_exp_f32 v{V_B}, v{V_B}")
    E("    s_nop 0")
    E(f"    v_add_f32 v{V_B}, 1.0, v{V_B}")
    E(f"    v_rcp_f32 v{V_B}, v{V_B}")
    E("    s_nop 0")
    E(f"    v_mul_f32 v{V_A}, v{V_A}, v{V_B}")
    for w in range(8):
        E(f"    v_mul_f32 v{LG+w}, v{LG+w}, v{V_A}")
    AC = 104
    for j in range(14):
        E(f"    v_mov_b32 v{AC+j}, 0")
    for w in range(8):
        for j in range(7):
            E(f"    v_lshlrev_b32 v{V_T}, 16, v{VBr(w)+j}")
            E(f"    v_and_b32 v{V_T2}, 0xffff0000, v{VBr(w)+j}")
            E(f"    v_fmac_f32 v{AC+2*j}, v{V_T}, v{LG+w}")
            E(f"    v_fmac_f32 v{AC+2*j+1}, v{V_T2}, v{LG+w}")
    for j in range(7):
        E(f"    v_cvt_pk_bf16_f32 v{QB+j}, v{AC+2*j}, v{AC+2*j+1}")
    srd(16, 20, 21, SZ_OAB, WS_OAB)
    E("    s_movk_i32 s36, 1792")
    E(f"    v_mul_lo_u32 v{V_T}, v{V_POS}, s36")
    E(f"    v_and_b32 v{V_T2}, 1, v{V_LANE}")
    E(f"    v_mul_u32_u24 v{V_T2}, 28, v{V_T2}")
    E(f"    v_add_u32 v{V_T}, v{V_T}, v{V_T2}")
    E("    s_mul_i32 s36, s4, 56")
    E("    s_add_u32 s36, s36, 896")
    E(f"    v_add_u32 v{V_T}, s36, v{V_T}")
    E(f"    buffer_store_dwordx4 v[{QB}:{QB+3}], v{V_T}, s[16:19], 0 offen")
    E(f"    buffer_store_dwordx3 v[{QB+4}:{QB+6}], v{V_T}, s[16:19], 0 offen offset:16")
    E(f"{lend}:")
    E("    s_endpgm")
    kernel_desc(name, 256)

def main():
    hdr = open("cdna_kernels/" + NAME + ".s.ref").read().split("\n")
    for l in hdr:
        if l.startswith("; @launch"):
            break
        if l.startswith(";"):
            E(l)
    E("; @launch kernel=k1_proj_kernel grid=(464,1,1) block=(256,1,1) lds=49152")
    E("; @launch kernel=k2_attn_kernel grid=(256,1,1) block=(512,1,1) lds=49152")
    E("; @launch kernel=k3_out_kernel grid=(224,1,1) block=(512,1,1) lds=65536")
    E('.amdgcn_target "amdgcn-amd-amdhsa--gfx950"')
    E(".text")
    gen_k1()
    gen_k2()
    gen_k3()
    open(os.environ.get("OUTS", "cdna_kernels/" + NAME + ".s"), "w").write("\n".join(out) + "\n")

main()
```
